```python
import torch

def _softmax(x, axis=-1):
    return torch.softmax(x, dim=axis)
def _gelu(x):
    return torch.nn.functional.gelu(x, approximate="tanh")
def _silu(x):
    return torch.nn.functional.silu(x)
def _sigmoid(x):
    return torch.sigmoid(x)
def _layernorm(x, axis=-1, eps=1e-5):
    m = x.mean(dim=axis, keepdim=True)
    v = x.var(dim=axis, keepdim=True, unbiased=False)
    return (x - m) / torch.sqrt(v + eps)
def _scatter_add(tgt, idx, src, axis=0):
    return tgt.clone().index_add_(axis, idx, src)
def _segment_sum(src, seg, n):
    out = torch.zeros((n,) + src.shape[1:], dtype=src.dtype)
    return out.index_add_(0, seg, src)
def _pad(x, pw):
    flat = tuple(v for pair in reversed(pw) for v in pair)
    return torch.nn.functional.pad(x, flat)

kernel_name = 'gated_mix__grouped_kv_mqa__dense_activation_relu__prompt'

def setup_inputs():

    _w = (lambda a: (lambda t: t.to(torch.bfloat16) if t.is_floating_point() else t)(torch.as_tensor(a)))
    def _A_setup():
        B, S, D, H = 1, 2048, 640, 32
        Dh = D // H
        return {
            "x": _w((lambda *s: torch.randn(*s, dtype=torch.bfloat16) * 0.05)(B, S, D)),
            "wq": _w((lambda *s: torch.randn(*s, dtype=torch.bfloat16) * 0.8)(D, H * Dh)),
            "wk": _w((lambda *s: torch.randn(*s, dtype=torch.bfloat16) * 0.8)(D, Dh)),
            "wv": _w((lambda *s: torch.randn(*s, dtype=torch.bfloat16) * 0.2)(D, Dh)),
            "wo": _w((lambda *s: torch.randn(*s, dtype=torch.bfloat16) * 0.2)(H * Dh, D)),
        }
    _A_in = _A_setup()

    def _B_setup():
        B, S, D, Dff = 1, 2048, 640, 1536
        return {
            "x": _w((lambda *s: torch.randn(*s, dtype=torch.bfloat16) * 0.05)(B, S, D)),
            "w1": _w((lambda *s: torch.randn(*s, dtype=torch.bfloat16) * 0.05)(D, Dff)),
            "w2": _w((lambda *s: torch.randn(*s, dtype=torch.bfloat16) * 0.05)(Dff, D)),
        }
    _B_in = _B_setup()

    return {
        "A_x": _A_in["x"],
        "A_wq": _A_in["wq"],
        "A_wk": _A_in["wk"],
        "A_wv": _A_in["wv"],
        "A_wo": _A_in["wo"],
        "B_x": _B_in["x"],
        "B_w1": _B_in["w1"],
        "B_w2": _B_in["w2"],
        "gate_w": _w((lambda *s: torch.randn(*s, dtype=torch.bfloat16) * 0.05)(640) * 16.0),
    }

def reference(A_x, A_wq, A_wk, A_wv, A_wo, B_x, B_w1, B_w2, gate_w):
    def _A_ref(x, wq, wk, wv, wo):
        B, S, D = x.shape
        H = 32
        Dh = D // H
        q = (lambda x, *d: x.permute(*d))((x @ wq).reshape(B, S, H, Dh), 0, 2, 1, 3)
        k = x @ wk
        v = x @ wv
        scores = torch.einsum("bhqd,bkd->bhqk", q, k) * (Dh ** -0.5)
        p = _softmax(scores, axis=-1)
        o = torch.einsum("bhqk,bkd->bhqd", p, v)
        return (lambda x, *d: x.permute(*d))(o, 0, 2, 1, 3).reshape(B, S, H * Dh) @ wo

    def _B_ref(x, w1, w2):
        h = torch.einsum("bsd,df->bsf", x, w1)
        zero = torch.zeros_like(h)
        h = torch.maximum(h, zero)
        return torch.einsum("bsf,fd->bsd", h, w2)

    x = A_x
    g = _sigmoid((x * gate_w).sum(-1, keepdims=True))
    a = _A_ref(x, A_wq, A_wk, A_wv, A_wo)
    b = _B_ref(x, B_w1, B_w2)
    return g * a + (1 - g) * b
```

```python
import re


def vr(a, n=1):
    return f"v{a}" if n == 1 else f"v[{a}:{a+n-1}]"


def ar(a, n=1):
    return f"a{a}" if n == 1 else f"a[{a}:{a+n-1}]"


def sr(a, n=1):
    return f"s{a}" if n == 1 else f"s[{a}:{a+n-1}]"


class Counter:
    def __init__(self, name, maxn):
        self.name, self.maxn = name, maxn
        self.q = []

    def issue(self, tag):
        self.q.append(tag)

    def need(self, tags):
        if isinstance(tags, str):
            tags = [tags]
        last = -1
        for k, t in enumerate(self.q):
            if t in tags:
                last = k
        if last < 0:
            return None
        n = len(self.q) - 1 - last
        n = min(n, self.maxn)
        self.q = self.q[len(self.q) - n:] if n else []
        return n

    def clear(self):
        self.q = []

    def copy(self):
        c = Counter(self.name, self.maxn)
        c.q = list(self.q)
        return c


class Asm:
    def __init__(self):
        self.lines = []
        self.vm = Counter("vmcnt", 63)
        self.lg = Counter("lgkmcnt", 15)

    def __call__(self, s):
        for l in s.split("\n"):
            l = l.strip()
            if l:
                self.lines.append(l)

    def label(self, name):
        self.lines.append(name + ":")

    def c(self, text):
        self.lines.append("; " + text)

    def vmem(self, s, tag):
        self(s)
        self.vm.issue(tag)

    def ds(self, s, tag):
        self(s)
        self.lg.issue(tag)

    def wait(self, vm=None, lg=None):
        parts = []
        if vm is not None:
            n = self.vm.need(vm)
            if n is not None:
                parts.append(f"vmcnt({n})")
        if lg is not None:
            n = self.lg.need(lg)
            if n is not None:
                parts.append(f"lgkmcnt({n})")
        if parts:
            self("s_waitcnt " + " ".join(parts))
            return True
        return False

    def wait_all(self, vm=True, lg=True):
        parts = []
        if vm:
            parts.append("vmcnt(0)")
            self.vm.clear()
        if lg:
            parts.append("lgkmcnt(0)")
            self.lg.clear()
        self("s_waitcnt " + " ".join(parts))

    def snapshot(self):
        return (self.vm.copy(), self.lg.copy())

    def restore(self, snap):
        self.vm, self.lg = snap[0].copy(), snap[1].copy()

    def text(self):
        out = []
        for l in self.lines:
            out.append(l if l.endswith(":") or l.startswith(".") else "    " + l)
        return "\n".join(out) + "\n"


_REG = re.compile(r"(?<![\w.])([vas])(?:(\d+)|\[(\d+):(\d+)\])")
TRANS = ("v_exp_f32", "v_log_f32", "v_rcp_f32", "v_rsq_f32", "v_sqrt_f32")


def regs_of(op):
    out = set()
    for m in _REG.finditer(op):
        k = m.group(1)
        if m.group(2) is not None:
            out.add((k, int(m.group(2))))
        else:
            for r in range(int(m.group(3)), int(m.group(4)) + 1):
                out.add((k, r))
    if re.search(r"\bvcc\b", op):
        out.add(("s", "vcc"))
    if re.search(r"\bexec(_lo|_hi)?\b", op):
        out.add(("s", "exec"))
    if re.search(r"\bm0\b", op):
        out.add(("s", "m0"))
    return out


def split_ops(rest):
    ops, depth, cur = [], 0, ""
    for ch in rest:
        if ch == "[":
            depth += 1
        if ch == "]":
            depth -= 1
        if ch == "," and depth == 0:
            ops.append(cur.strip())
            cur = ""
        else:
            cur += ch
    if cur.strip():
        ops.append(cur.strip())
    return ops


class Ins:
    def __init__(self, text):
        self.text = text
        t = text.split(";")[0].strip()
        p = t.split(None, 1)
        self.op = p[0]
        ops = split_ops(p[1]) if len(p) > 1 else []
        self.ops = ops
        op = self.op
        self.mfma = op.startswith("v_mfma") or op.startswith("v_smfmac")
        self.valu = op.startswith("v_") and not self.mfma
        self.trans = any(op.startswith(x) for x in TRANS)
        self.salu = op.startswith("s_")
        self.vmem = op.startswith("buffer_") or op.startswith("global_")
        self.dsop = op.startswith("ds_")
        self.w, self.r = set(), set()
        self.srcc, self.ab = set(), set()
        self.slots = 1
        if op == "s_nop":
            self.slots = int(ops[0], 0) + 1
        if self.mfma:
            self.w = regs_of(ops[0])
            self.ab = regs_of(ops[1]) | regs_of(ops[2])
            if op.startswith("v_smfmac"):
                self.srcc = regs_of(ops[0])
                self.ab |= regs_of(ops[3].split()[0])
            else:
                self.srcc = regs_of(ops[3].split()[0])
            self.r = self.ab | self.srcc
            self.passes = 8 if "32x32" in op else 4
        elif self.valu:
            nd = 1
            if op.startswith("v_permlane") and "swap" in op:
                self.w = regs_of(ops[0]) | regs_of(ops[1])
                self.r = set(self.w)
            else:
                if op.startswith(("v_add_co", "v_sub_co", "v_addc_co")):
                    nd = 2
                for o in ops[:nd]:
                    self.w |= regs_of(o)
                for o in ops[nd:]:
                    self.r |= regs_of(o)
                if op.startswith(("v_fmac", "v_writelane")):
                    self.r |= self.w
        elif self.vmem:
            lds = re.search(r"\blds\b", t) is not None
            if "load" in op and not lds:
                self.w = regs_of(ops[0])
                for o in ops[1:]:
                    self.r |= regs_of(o)
            else:
                for o in ops:
                    self.r |= regs_of(o)
                if lds:
                    self.r.add(("s", "m0"))
            self.lds = lds
            self.wide_store = "store" in op and (op.endswith("x4") or op.endswith("x3"))
            if self.wide_store:
                self.data = regs_of(ops[0])
        elif self.dsop:
            if "read" in op or "bpermute" in op or "swizzle" in op:
                self.w = regs_of(ops[0])
                for o in ops[1:]:
                    self.r |= regs_of(o)
            else:
                for o in ops:
                    self.r |= regs_of(o)
        elif self.salu:
            if op.startswith(("s_cmp", "s_cbranch", "s_branch", "s_waitcnt", "s_barrier", "s_nop", "s_endpgm", "s_sleep", "s_setprio")):
                for o in ops:
                    self.r |= regs_of(o)
            else:
                if ops:
                    self.w = regs_of(ops[0])
                for o in ops[1:]:
                    self.r |= regs_of(o)
                if "saveexec" in op:
                    self.w.add(("s", "exec"))


def vec(s):
    return {x for x in s if x[0] in "va"}


def sca(s):
    return {x for x in s if x[0] == "s"}


def check_path(lines, name=""):
    ins = [Ins(l) for l in lines if l and not l.endswith(":") and not l.startswith((";", "."))]
    bad = []
    for k, c in enumerate(ins):
        dist = 0
        for j in range(k - 1, max(-1, k - 24), -1):
            p = ins[j]
            need = 0
            why = ""
            if p.mfma:
                D = p.w
                full = {4: 8, 8: 12}[p.passes]
                if c.mfma:
                    if D & c.ab:
                        need, why = full, "mfma D -> mfma A/B"
                    elif D & c.srcc and not (D == c.srcc and p.passes == c.passes):
                        need, why = full - 2, "mfma D -> mfma C overlap"
                    elif D & c.w and not (D == c.srcc):
                        if p.passes != c.passes or D != c.w:
                            need, why = full - 2, "mfma D -> mfma D (shape differs)"
                elif (c.valu or c.vmem or c.dsop) and (D & (c.r | c.w)):
                    need, why = full, "mfma D -> valu/mem"
                if c.valu and (p.srcc & c.w) and need < {4: 3, 8: 7}[p.passes]:
                    need, why = {4: 3, 8: 7}[p.passes], "mfma C read -> valu write"
            elif p.valu:
                vw, sw = vec(p.w), sca(p.w)
                if c.mfma and (vw & c.r):
                    need, why = 2, "valu -> mfma"
                if c.mfma and ("s", "exec") in sw:
                    need, why = 4, "valu exec -> mfma"
                if p.trans and c.valu and (vw & c.r):
                    need, why = max(need, 1), "trans -> valu"
                if c.valu and c.op.startswith("v_permlane") and (vw & c.r):
                    need, why = 2, "valu -> permlane"
                if c.valu and "dpp" in c.text and (vw & c.r):
                    need, why = 2, "valu -> dpp"
                if c.valu and c.op.startswith(("v_readlane", "v_readfirstlane")) and (vw & c.r):
                    need, why = max(need, 1), "valu -> readlane"
                if c.vmem and (sw & c.r):
                    need, why = 5, "valu sgpr -> vmem"
                if c.valu and (sw & c.r):
                    need, why = max(need, 4 if c.op.startswith(("v_readlane", "v_writelane")) else 2), "valu sgpr -> valu"
                if ("sdwa" in p.text or "op_sel:" in p.text) and c.valu and (vw & (c.r | c.w)):
                    need, why = max(need, 1), "opsel -> valu"
            elif p.salu:
                if ("s", "m0") in p.w and c.vmem and getattr(c, "lds", False):
                    need, why = 1, "m0 -> lds dma"
            elif p.vmem and getattr(p, "wide_store", False):
                if (c.valu or c.mfma) and (p.data & c.w):
                    need, why = 2, "wide store data WAR"
                elif p.data & c.w:
                    need, why = 1, "wide store data WAR"
            if need > dist:
                bad.append(f"{name}: need {need} have {dist} ({why}): [{p.text}] -> [{c.text}]")
            dist += p.slots
    return bad
```

```python
import sys, os, math
sys.path.insert(0, os.path.dirname(os.path.abspath(__file__)))
from asmlib import *

NAME = "gated_mix__grouped_kv_mqa__dense_activation_relu__prompt"
OPT = dict(stamps=False, force_slow=False, out_aux="", h_start=12, sig_kt=2, poll_kt=10, oflag_round=3, opoll_round=10)

WS_KV = 0
WS_H = 1 << 20
WS_O = 8 << 20
WS_W = 12 << 20
WS_F = 16 << 20
WS_T = 17 << 20
WS_SIZE = 268435456
SL = 2176 * 160
KH = 34 * 5120
SLOT = 24576
GIMG = 5 * SLOT
GARR = GIMG + 1280
BADF = GARR + 256
XCH = BADF + 256
LDS_BYTES = XCH + 24576
HIB = 57344
REGION = 12 * 5120
sX, sWQ, sKV, sW1, sWS, sDBG, sOUT, sG, sRL, sRD = 4, 8, 12, 16, 20, 24, 28, 32, 36, 40
pWK, pWV, pWO, pW2 = 44, 46, 48, 50
sI, sJ, sW, sT, sCH, sROLE, sKL, sKC = 52, 53, 54, 55, 56, 57, 58, 59
sXO, sXO2, sWQO, sKVO, sW1O, sW1O2 = 60, 61, 62, 63, 64, 65
sMX, sMWQ, sMKV, sMW1 = 66, 67, 68, 69
sHI = 70
sONE = 72
sT0, sT1, sT2, sT3, sT4, sT5 = 74, 75, 76, 77, 78, 79
sKVT, sKVN = 80, 81
sHO0, sHO1 = 82, 83
sWRO, sWRM = 84, 85
sRLS, sRLD = 86, 87
sSPIN, sSLOW = 88, 89
sM0, sM1 = 90, 92
sTS = 94
sX0, sWQ0, sKV0, sW10 = 96, 97, 98, 99
vLANE, vXD, vWQD, vL16, vW1D = 1, 2, 3, 6, 7
vXR, vWQR, vKVR, vW1R, vGR, vGD = 10, 18, 20, 22, 28, 29
vT0, vT1 = 30, 31
vQA, vQB, vTH = 32, 48, 64
vS = 32
vO = 96
vF = 160
vQ = 208
vWF = 232
vRL, vRLA = 64, 84
vIDX, vKVV, vKVK8 = 2, 3, 4
vPOLL = 5
vP2R, vG0, vG1, vOUTA, vXW, vXRD = 7, 8, 10, 12, 13, 14
vACC, vOF, vW2 = 32, 96, 176
aKV, aX, aH = 0, 64, 64
SPIN_MAX = 1 << 20

C_SCALE = math.log2(math.e) / math.sqrt(20.0)


def f2u(x):
    import struct
    return struct.unpack("<I", struct.pack("<f", x))[0]


def lds_ref(vlo, vhi, off):
    if off < 65536:
        return f"{vr(vlo)} offset:{off}"
    return f"{vr(vhi)} offset:{off-HIB}"


class Gen:
    def __init__(self, **opt):
        self.o = dict(OPT)
        self.o.update(opt)
        self.a = Asm()
        self.segs = {}
        self.nstamp = 0

    def seg(self, name):
        self._cur = (name, len(self.a.lines))

    def endseg(self):
        n, s = self._cur
        self.segs[n] = self.a.lines[s:]

    def stamp(self, idx):
        if not self.o["stamps"]:
            return
        a = self.a
        a(f"s_memtime {sr(sTS,2)}")
        a("s_waitcnt lgkmcnt(0)")
        a.lg.clear()
        a(f"v_writelane_b32 v0, {sr(sTS)}, {idx}")

    def prologue(self):
        a = self.a
        a("s_cmp_ge_u32 s2, 0x100")
        a("s_cbranch_scc1 L_end")
        for reg, off in ((sX, 0), (sWQ, 8), (pWK, 16), (pWV, 24), (sG, 64), (sW1, 48), (sWS, 88), (sDBG, 80), (pWO, 32), (pW2, 56), (sOUT, 72)):
            a(f"s_load_dwordx2 {sr(reg,2)}, s[0:1], {off}")
        a(f"v_lshrrev_b32 {vr(vT0)}, 6, v0")
        a(f"v_and_b32 {vr(vLANE)}, 63, v0")
        a(f"v_readfirstlane_b32 {sr(sW)}, {vr(vT0)}")
        a(f"s_and_b32 {sr(sI)}, s2, 31")
        a(f"s_lshr_b32 {sr(sJ)}, s2, 5")
        a(f"s_lshr_b32 {sr(sT0)}, {sr(sI)}, 3")
        a(f"s_mul_i32 {sr(sT0)}, {sr(sT0)}, 3")
        a(f"s_and_b32 {sr(sT1)}, {sr(sI)}, 7")
        a(f"s_add_u32 {sr(sT0)}, {sr(sT0)}, {sr(sT1)}")
        a(f"s_add_u32 {sr(sT0)}, {sr(sT0)}, {sr(sJ)}")
        a(f"s_mul_i32 {sr(sT1)}, {sr(sT0)}, 26")
        a(f"s_lshr_b32 {sr(sT1)}, {sr(sT1)}, 8")
        a(f"s_mul_i32 {sr(sT1)}, {sr(sT1)}, 10")
        a(f"s_sub_u32 {sr(sKL)}, {sr(sT0)}, {sr(sT1)}")
        a(f"s_mov_b32 {sr(sKC)}, {sr(sKL)}")
        a(f"s_and_b32 {sr(sT)}, {sr(sW)}, 1")
        a(f"s_lshr_b32 {sr(sCH)}, {sr(sW)}, 1")
        a(f"v_lshlrev_b32 {vr(vL16)}, 4, {vr(vLANE)}")
        a(f"s_lshl_b32 {sr(sT0)}, {sr(sW)}, 2")
        a(f"v_lshrrev_b32 {vr(vT0)}, 4, {vr(vLANE)}")
        a(f"v_add_u32 {vr(vT0)}, {sr(sT0)}, {vr(vT0)}")
        a(f"v_xor_b32 {vr(vT0)}, {vr(vT0)}, {vr(vLANE)}")
        a(f"v_and_b32 {vr(vT0)}, 7, {vr(vT0)}")
        a(f"v_lshlrev_b32 {vr(vT0)}, 4, {vr(vT0)}")
        a(f"v_lshrrev_b32 {vr(vT1)}, 3, {vr(vLANE)}")
        a(f"s_movk_i32 {sr(sT1)}, 1280")
        a(f"v_mad_u32_u24 {vr(vXD)}, {vr(vT1)}, {sr(sT1)}, {vr(vT0)}")
        for n in range(3):
            a(f"v_add_u32 {vr(vT0)}, {64*n}, {vr(vLANE)}")
            a(f"v_mul_u32_u24 {vr(vT1)}, 0x19a, {vr(vT0)}")
            a(f"v_lshrrev_b32 {vr(vT1)}, 12, {vr(vT1)}")
            a(f"v_mul_u32_u24 {vr(vT1)}, {1280-160}, {vr(vT1)}")
            a(f"v_lshl_add_u32 {vr(vWQD+n)}, {vr(vLANE)}, 4, {vr(vT1)}")
        a(f"s_mul_i32 {sr(sX0)}, {sr(sI)}, {64*1280}")
        a(f"s_mul_i32 {sr(sT0)}, {sr(sW)}, {8*1280}")
        a(f"s_add_u32 {sr(sX0)}, {sr(sX0)}, {sr(sT0)}")
        a(f"s_mul_i32 {sr(sWQ0)}, {sr(sW)}, {16*1280}")
        a(f"s_mul_i32 {sr(sT0)}, {sr(sJ)}, 160")
        a(f"s_add_u32 {sr(sWQ0)}, {sr(sWQ0)}, {sr(sT0)}")
        a(f"s_mul_i32 {sr(sKV0)}, {sr(sW)}, 640")
        a(f"s_lshl_b32 {sr(sMX)}, {sr(sW)}, 10")
        a(f"s_mul_i32 {sr(sMWQ)}, {sr(sW)}, 2560")
        a(f"s_add_u32 {sr(sMWQ)}, {sr(sMWQ)}, 8192")
        a(f"s_add_u32 {sr(sMKV)}, {sr(sKV0)}, 18432")
        a(f"s_mul_i32 {sr(sMW1)}, {sr(sW)}, 6144")
        a("s_waitcnt lgkmcnt(0)")
        for s, n in ((sX, 2048*1280), (sWQ, 640*1280), (sG, 1280)):
            a(f"s_mov_b32 {sr(s+2)}, {n}")
            a(f"s_mov_b32 {sr(s+3)}, 0x20000")
        a(f"s_bitcmp1_b32 {sr(sJ)}, 0")
        a(f"s_cselect_b32 {sr(sKV)}, {sr(pWV)}, {sr(pWK)}")
        a(f"s_cselect_b32 {sr(sKV+1)}, {sr(pWV+1)}, {sr(pWK+1)}")
        a(f"s_cmp_lt_u32 {sr(sJ)}, 4")
        a(f"s_cselect_b32 {sr(sKV+2)}, {640*40}, 0")
        a(f"s_mov_b32 {sr(sKV+3)}, 0x20000")
        a(f"s_mul_i32 {sr(sT0)}, {sr(sW)}, 320")
        a(f"s_add_u32 m0, {sr(sT0)}, {GIMG}")
        a("s_mov_b64 exec, 0xfffff")
        a.vmem(f"buffer_load_dwordx4 {vr(vL16)}, {sr(sG,4)}, {sr(sT0)} offen lds", "G")
        a("s_mov_b64 exec, -1")
        for L in range(4):
            for grp in self.load_stage(L):
                grp()
        for s, n in ((sW1, 640*3072), (sWS, WS_SIZE), (sDBG, 256), (sOUT, 2048*1280)):
            a(f"s_mov_b32 {sr(s+2)}, {n}")
            a(f"s_mov_b32 {sr(s+3)}, 0x20000")
        a(f"s_mov_b32 {sr(sHI)}, 0")
        a(f"s_mov_b32 {sr(sHI+1)}, -1")
        a(f"s_mov_b32 {sr(sONE)}, 0x100000")
        a(f"s_mov_b32 {sr(sONE+1)}, 0x100000")
        a(f"s_mov_b32 {sr(sSLOW)}, 0")
        a(f"s_lshr_b32 {sr(sT0)}, {sr(sJ)}, 1")
        a(f"s_add_u32 {sr(sT0)}, {sr(sT0)}, 2")
        a(f"s_and_b32 {sr(sT1)}, {sr(sJ)}, 1")
        a(f"s_add_u32 {sr(sT1)}, {sr(sT1)}, 1")
        a(f"s_cmp_eq_u32 {sr(sT0)}, {sr(sW)}")
        a(f"s_cselect_b32 {sr(sROLE)}, {sr(sT1)}, 0")
        a(f"s_movk_i32 {sr(sT1)}, 3072")
        for n in range(3):
            a(f"v_add_u32 {vr(vT0)}, {64*n}, {vr(vLANE)}")
            a(f"v_mul_u32_u24 {vr(vT1)}, 0xab, {vr(vT0)}")
            a(f"v_lshrrev_b32 {vr(vT1)}, 12, {vr(vT1)}")
            a(f"v_mul_u32_u24 {vr(vXR)}, 24, {vr(vT1)}")
            a(f"v_sub_u32 {vr(vT0)}, {vr(vT0)}, {vr(vXR)}")
            a(f"v_lshlrev_b32 {vr(vXR)}, 1, {vr(vT1)}")
            a(f"v_and_b32 {vr(vXR)}, 4, {vr(vXR)}")
            a(f"v_xor_b32 {vr(vT0)}, {vr(vT0)}, {vr(vXR)}")
            a(f"v_lshlrev_b32 {vr(vT0)}, 4, {vr(vT0)}")
            a(f"v_mad_u32_u24 {vr(vW1D+n)}, {vr(vT1)}, {sr(sT1)}, {vr(vT0)}")
            if n:
                a(f"v_subrev_u32 {vr(vW1D+n)}, {1024*n}, {vr(vW1D+n)}")
        a(f"s_mul_i32 {sr(sW10)}, {sr(sW)}, {16*3072}")
        a(f"s_mul_i32 {sr(sT0)}, {sr(sJ)}, 384")
        a(f"s_add_u32 {sr(sW10)}, {sr(sW10)}, {sr(sT0)}")
        a(f"v_and_b32 {vr(vT0)}, 31, {vr(vLANE)}")
        a(f"s_lshl_b32 {sr(sT0)}, {sr(sT)}, 5")
        a(f"v_add_u32 {vr(vT0)}, {sr(sT0)}, {vr(vT0)}")
        a(f"v_bfe_u32 {vr(vT1)}, {vr(vLANE)}, 1, 3")
        a(f"v_lshrrev_b32 {vr(vGR)}, 5, {vr(vLANE)}")
        a(f"v_xor_b32 {vr(vT1)}, {vr(vT1)}, {vr(vGR)}")
        a(f"v_lshlrev_b32 {vr(vT1)}, 4, {vr(vT1)}")
        a(f"v_lshl_add_u32 {vr(vXR)}, {vr(vT0)}, 7, {vr(vT1)}")
        for s in range(1, 4):
            a(f"v_xor_b32 {vr(vXR+s)}, {32*s}, {vr(vXR)}")
        for s in range(4):
            a(f"v_add_u32 {vr(vXR+4+s)}, {HIB}, {vr(vXR+s)}")
        a(f"v_bfe_u32 {vr(vT0)}, {vr(vLANE)}, 2, 2")
        a(f"v_lshl_add_u32 {vr(vT0)}, {vr(vGR)}, 3, {vr(vT0)}")
        a(f"v_bfe_u32 {vr(vT1)}, {vr(vLANE)}, 4, 1")
        a(f"v_and_b32 {vr(vGD)}, 3, {vr(vLANE)}")
        a(f"v_lshl_add_u32 {vr(vT1)}, {vr(vT1)}, 2, {vr(vGD)}")
        a(f"v_min_u32 {vr(vGD)}, 4, {vr(vT1)}")
        a(f"v_lshlrev_b32 {vr(vGD)}, 3, {vr(vGD)}")
        a(f"v_mul_u32_u24 {vr(vWQR)}, 160, {vr(vT0)}")
        a(f"s_mul_i32 {sr(sT0)}, {sr(sCH)}, 80")
        a(f"v_add3_u32 {vr(vWQR)}, {vr(vWQR)}, {vr(vGD)}, {sr(sT0)}")
        a(f"v_add_u32 {vr(vWQR+1)}, {HIB}, {vr(vWQR)}")
        a(f"v_mad_u32_u24 {vr(vKVR)}, {vr(vT0)}, 40, {vr(vGD)}")
        a(f"v_add_u32 {vr(vKVR+1)}, {HIB}, {vr(vKVR)}")
        a(f"v_mul_u32_u24 {vr(vGD)}, 384, {vr(vT0)}")
        a(f"v_lshl_add_u32 {vr(vGD)}, {vr(vT1)}, 3, {vr(vGD)}")
        a(f"v_bfe_u32 {vr(vT1)}, {vr(vLANE)}, 3, 1")
        a(f"s_mul_i32 {sr(sT0)}, {sr(sCH)}, 3")
        for ct in range(3):
            a(f"s_add_u32 {sr(sT1)}, {sr(sT0)}, {ct}")
            a(f"v_xor_b32 {vr(vT0)}, {sr(sT1)}, {vr(vT1)}")
            a(f"v_lshl_add_u32 {vr(vW1R+ct)}, {vr(vT0)}, 6, {vr(vGD)}")
            a(f"v_add_u32 {vr(vW1R+3+ct)}, {HIB}, {vr(vW1R+ct)}")
        a(f"v_lshlrev_b32 {vr(vGR)}, 4, {vr(vGR)}")
        a(f"v_add_u32 {vr(vGR)}, {GIMG}, {vr(vGR)}")
        for q in range(4):
            for r in range(12):
                a(f"v_mov_b32 {vr(vO+16*q+r)}, 0")
        if self.o["stamps"]:
            a("v_mov_b32 v0, 0")
        self.stamp(0)
        a(f"s_cmp_eq_u32 {sr(sROLE)}, 1")
        a("s_cbranch_scc1 L_qpass_1")
        a(f"s_cmp_eq_u32 {sr(sROLE)}, 2")
        a("s_cbranch_scc1 L_qpass_2")

    def load_stage(self, L):
        a = self.a
        slot = (L % 5) * SLOT
        tag = f"L{L}"
        g = []

        def adv():
            a(f"s_add_u32 {sr(sKL)}, {sr(sKL)}, 1")
            a(f"s_cmp_eq_u32 {sr(sKL)}, 10")
            a(f"s_cselect_b32 {sr(sKL)}, 0, {sr(sKL)}")

        if L < 10:
            def g0():
                a(f"s_lshl_b32 {sr(sXO)}, {sr(sKL)}, 7")
                a(f"s_add_u32 {sr(sXO)}, {sr(sXO)}, {sr(sX0)}")
                a(f"s_add_u32 m0, {sr(sMX)}, {slot}")
                a(f"s_add_u32 {sr(sXO2)}, {sr(sXO)}, {32*1280}")
                a.vmem(f"buffer_load_dwordx4 {vr(vXD)}, {sr(sX,4)}, {sr(sXO)} offen lds", tag)

            def g1():
                a(f"s_add_u32 m0, {sr(sMX)}, {slot+4096}")
                a(f"s_mul_i32 {sr(sWQO)}, {sr(sKL)}, {64*1280}")
                a.vmem(f"buffer_load_dwordx4 {vr(vXD)}, {sr(sX,4)}, {sr(sXO2)} offen lds", tag)

            def g2():
                a(f"s_add_u32 m0, {sr(sMWQ)}, {slot}")
                a(f"s_add_u32 {sr(sWQO)}, {sr(sWQO)}, {sr(sWQ0)}")
                a.vmem(f"buffer_load_dwordx4 {vr(vWQD)}, {sr(sWQ,4)}, {sr(sWQO)} offen lds", tag)

            def g3():
                a(f"s_mul_i32 {sr(sKVO)}, {sr(sKL)}, 2560")
                a(f"s_add_u32 {sr(sKVO)}, {sr(sKVO)}, {sr(sKV0)}")
                a.vmem(f"buffer_load_dwordx4 {vr(vWQD+1)}, {sr(sWQ,4)}, {sr(sWQO)} offen offset:1024 lds", tag)

            def g4():
                a("s_mov_b32 exec_hi, 0")
                a.vmem(f"buffer_load_dwordx4 {vr(vWQD+2)}, {sr(sWQ,4)}, {sr(sWQO)} offen offset:2048 lds", tag)
                a(f"s_add_u32 m0, {sr(sMKV)}, {slot}")
                a("s_mov_b32 exec_hi, 0xff")
                a.vmem(f"buffer_load_dwordx4 {vr(vL16)}, {sr(sKV,4)}, {sr(sKVO)} offen lds", tag)
                a("s_mov_b32 exec_hi, -1")
                adv()
            g = [g0, g1, g2, g3, g4]
        else:
            def mk(n):
                def f():
                    if n == 0:
                        a(f"s_mul_i32 {sr(sW1O)}, {sr(sKL)}, {64*3072}")
                        a(f"s_add_u32 {sr(sW1O)}, {sr(sW1O)}, {sr(sW10)}")
                        a(f"s_add_u32 m0, {sr(sMW1)}, {slot}")
                        a(f"s_add_u32 {sr(sW1O2)}, {sr(sW1O)}, {8*3072}")
                    if n == 3:
                        a(f"s_add_u32 m0, {sr(sMW1)}, {slot+3072}")
                        adv()
                    off = f" offset:{1024*(n%3)}" if n % 3 else ""
                    a.vmem(f"buffer_load_dwordx4 {vr(vW1D+n%3)}, {sr(sW1,4)}, {sr(sW1O if n < 3 else sW1O2)} offen{off} lds", tag)
                return f
            g = [mk(n) for n in range(6)]
        return g

    def frag_reads(self, U, role):
        a = self.a
        n, s = U // 4, U % 4
        slot = (n % 5) * SLOT
        wf = vWF + 12 * (U % 2)
        tag = f"F{U}"
        if U < 40:
            a.ds(f"ds_read_b128 {ar(aX+4*U,4)}, " + lds_ref(vXR+s, vXR+4+s, slot), tag)
            for hd in range(2):
                for e in range(2):
                    a.ds(f"ds_read_b64_tr_b16 {vr(wf+4*hd+2*e,2)}, " + lds_ref(vWQR, vWQR+1, slot + 8192 + (16*s+4*e)*160 + 40*hd), tag)
            if role == 0:
                if s == 0:
                    a(f"s_lshl_b32 {sr(sT0)}, {sr(sKC)}, 7")
                    a(f"v_add_u32 {vr(vGD)}, {sr(sT0)}, {vr(vGR)}")
                    a(f"s_add_u32 {sr(sKC)}, {sr(sKC)}, 1")
                    a(f"s_cmp_eq_u32 {sr(sKC)}, 10")
                    a(f"s_cselect_b32 {sr(sKC)}, 0, {sr(sKC)}")
                a.ds(f"ds_read_b128 {vr(wf+8,4)}, {vr(vGD)} offset:{32*s}", tag)
            else:
                for e in range(2):
                    a.ds(f"ds_read_b64_tr_b16 {vr(wf+8+2*e,2)}, " + lds_ref(vKVR, vKVR+1, slot + 18432 + (16*s+4*e)*40), tag)
        else:
            for ct in range(3):
                for e in range(2):
                    a.ds(f"ds_read_b64_tr_b16 {vr(wf+4*ct+2*e,2)}, " + lds_ref(vW1R+ct, vW1R+3+ct, slot + (16*s+4*e)*384), tag)

    def p1_step(self, U, role, fill, after_barrier=None):
        a = self.a
        n, s = U // 4, U % 4
        if s == 3 and n < 19:
            a.wait(vm=f"L{n+1}")
            a("s_barrier")
            if after_barrier:
                after_barrier()
            if n + 4 <= 19:
                fill += self.load_stage(n + 4)
        if U + 1 < 80:
            self.frag_reads(U + 1, role)
        a.wait(lg=f"F{U}")
        wf = vWF + 12 * (U % 2)
        x = ar(aX + 4 * (U % 40), 4)
        for c in range(3):
            acc = (vQA + 16 * c) if U < 40 else (vF + 16 * c)
            cin = "0" if U % 40 == 0 else vr(acc, 16)
            if U < 40 and c == 2 and role == 2:
                a(f"v_mfma_f32_32x32x16_bf16 {vr(acc,16)}, {x}, {vr(wf+4*c,4)}, {cin}")
            else:
                a(f"v_mfma_f32_32x32x16_bf16 {vr(acc,16)}, {vr(wf+4*c,4)}, {x}, {cin}")
            if fill and (c < 2 or len(fill) > 2 * (3 - s)):
                fill.pop(0)()

    def qpass(self, role):
        a = self.a
        a.label(f"L_qpass_{role}")
        a.wait(vm="L0")
        a("s_barrier")
        self.frag_reads(0, role)
        fill = []
        for U in range(40):
            self.p1_step(U, role, fill)
        while fill:
            fill.pop(0)()
        self.stamp(1)
        a("s_nop 7")
        a(f"s_mul_i32 {sr(sT0)}, {sr(sW)}, 3072")
        a(f"s_add_u32 {sr(sT0)}, {sr(sT0)}, {XCH}")
        a(f"v_add_u32 {vr(vT0)}, {sr(sT0)}, {vr(vL16)}")
        for hd in range(2):
            acc = vQA + 16 * hd
            for p in range(6):
                a(f"v_cvt_pk_bf16_f32 {vr(vQ+6*hd+p)}, {vr(acc+2*p)}, {vr(acc+2*p+1)}")
            for p in (4, 5):
                a(f"v_cndmask_b32_e64 {vr(vQ+6*hd+p)}, {vr(vQ+6*hd+p)}, 0, {sr(sHI,2)}")
        for n in range(3):
            a.ds(f"ds_write_b128 {vr(vT0)}, {vr(vQ+4*n,4)} offset:{1024*n}", "QW")
        th = vTH
        if role == 0:
            a(f"v_mul_f32 {vr(th)}, {hex(f2u(-math.log2(math.e)))}, {vr(th)}")
            a(f"v_exp_f32 {vr(th)}, {vr(th)}")
            a(f"v_and_b32 {vr(vT1)}, 31, {vr(vLANE)}")
            a(f"v_add_f32 {vr(th)}, 1.0, {vr(th)}")
            a(f"v_rcp_f32 {vr(th)}, {vr(th)}")
            a(f"s_lshl_b32 {sr(sT0)}, {sr(sT)}, 7")
            a(f"s_add_u32 {sr(sT0)}, {sr(sT0)}, {GARR}")
            a(f"v_lshl_add_u32 {vr(vT1)}, {vr(vT1)}, 2, {sr(sT0)}")
            a.ds(f"ds_write_b32 {vr(vT1)}, {vr(th)}", "QW")
        else:
            a(f"s_lshl_b32 {sr(sT0)}, {sr(sI)}, 1")
            a(f"s_add_u32 {sr(sT0)}, {sr(sT0)}, {sr(sT)}")
            a(f"s_lshl_b32 {sr(sT0)}, {sr(sT0)}, 12")
            if role == 1:
                a(f"s_mov_b32 {sr(sT1)}, {hex(f2u(C_SCALE))}")
                for r in range(12):
                    a(f"v_mul_f32 {vr(th+r)}, {sr(sT1)}, {vr(th+r)}")
                for p in range(6):
                    a(f"v_cvt_pk_bf16_f32 {vr(th+p)}, {vr(th+2*p)}, {vr(th+2*p+1)}")
                a(f"v_mov_b32 {vr(th+6)}, 0x3f803f80")
                a(f"v_mov_b32 {vr(th+7)}, 0x3f80")
                a(f"v_cndmask_b32_e64 {vr(th+4)}, {vr(th+4)}, {vr(th+6)}, {sr(sHI,2)}")
                a(f"v_cndmask_b32_e64 {vr(th+5)}, {vr(th+5)}, {vr(th+7)}, {sr(sHI,2)}")
                a(f"v_and_b32 {vr(vT0)}, 0x33, {vr(vLANE)}")
                a(f"v_bfe_u32 {vr(vT1)}, {vr(vLANE)}, 2, 1")
                a(f"v_lshl_or_b32 {vr(vT0)}, {vr(vT1)}, 3, {vr(vT0)}")
                a(f"v_bfe_u32 {vr(vT1)}, {vr(vLANE)}, 3, 1")
                a(f"v_lshl_or_b32 {vr(vT0)}, {vr(vT1)}, 2, {vr(vT0)}")
                a(f"v_lshlrev_b32 {vr(vT1)}, 3, {vr(vT0)}")
                a(f"v_lshlrev_b32 {vr(vT0)}, 4, {vr(vT0)}")
                a(f"buffer_store_dwordx4 {vr(th,4)}, {vr(vT0)}, {sr(sWS,4)}, {sr(sT0)} offen sc1")
                a(f"buffer_store_dwordx2 {vr(th+4,2)}, {vr(vT1)}, {sr(sWS,4)}, {sr(sT0)} offen offset:3072 sc1")
                a(f"s_cmp_lg_u32 {sr(sJ)}, 0")
                a("s_cbranch_scc1 L_noclear")
                a(f"s_lshl_b32 {sr(sT0)}, {sr(sI)}, 7")
                a(f"s_add_u32 {sr(sT0)}, {sr(sT0)}, {WS_F}")
                a(f"v_mov_b32 {vr(th+8)}, 0")
                a(f"v_lshlrev_b32 {vr(vT0)}, 2, {vr(vLANE)}")
                a("s_mov_b64 exec, 0xff")
                a(f"buffer_store_dword {vr(th+8)}, {vr(vT0)}, {sr(sWS,4)}, {sr(sT0)} offen sc1")
                a("s_mov_b64 exec, -1")
                a.label("L_noclear")
            else:
                for p in range(8):
                    a(f"v_cvt_pk_bf16_f32 {vr(th+p)}, {vr(th+2*p)}, {vr(th+2*p+1)}")
                a(f"v_mov_b32 {vr(th+8)}, 0x3f803f80")
                for p in range(8):
                    a(f"v_cndmask_b32_e64 {vr(th+p)}, {vr(th+p)}, {vr(th+8)}, {sr(sONE,2)}")
                a(f"buffer_store_dwordx4 {vr(th,4)}, {vr(vL16)}, {sr(sWS,4)}, {sr(sT0)} offen offset:1024 sc1")
                a(f"buffer_store_dwordx4 {vr(th+4,4)}, {vr(vL16)}, {sr(sWS,4)}, {sr(sT0)} offen offset:2048 sc1")
        a.wait_all(vm=False)
        if role != 2:
            a("s_branch L_ffn1")

    def relayout_setup(self):
        a = self.a
        D, P, E, O_, G_ = sT0, sT1, sT2, sT3, sT4
        a(f"s_lshl_b32 {sr(D)}, s2, 1")
        a(f"s_add_u32 {sr(D)}, {sr(D)}, {sr(sW)}")
        a(f"s_add_u32 {sr(P)}, s2, 512")
        a(f"s_cmp_lt_u32 {sr(sW)}, 2")
        a(f"s_cselect_b32 {sr(D)}, {sr(D)}, {sr(P)}")
        a(f"s_cmp_eq_u32 {sr(sW)}, 3")
        a(f"s_cselect_b32 {sr(D)}, 1000, {sr(D)}")
        a(f"s_cmp_ge_u32 {sr(D)}, 192")
        a(f"s_cselect_b32 {sr(P)}, {KH - 192*640}, 0")
        a(f"s_mul_i32 {sr(sRLD)}, {sr(D)}, 640")
        a(f"s_add_u32 {sr(sRLD)}, {sr(sRLD)}, {sr(P)}")
        a(f"s_lshl_b32 {sr(sRLS)}, {sr(D)}, 2")
        a(f"s_mov_b32 {sr(sRL)}, {sr(pW2)}")
        a(f"s_mov_b32 {sr(sRL+1)}, {sr(pW2+1)}")
        a(f"s_mov_b32 {sr(sRL+2)}, {1536*1280}")
        a(f"s_mov_b32 {sr(sRL+3)}, 0x20000")
        a(f"s_mov_b32 {sr(sRD)}, {sr(sWS)}")
        a(f"s_mov_b32 {sr(sRD+1)}, {sr(sWS+1)}")
        a(f"s_mov_b32 {sr(sRD+2)}, {WS_SIZE}")
        a(f"s_mov_b32 {sr(sRD+3)}, 0x20000")
        a(f"s_cmp_lt_u32 {sr(D)}, 384")
        a("s_cbranch_scc1 L_rl_done")
        a(f"s_mov_b32 {sr(sRL)}, {sr(pWO)}")
        a(f"s_mov_b32 {sr(sRL+1)}, {sr(pWO+1)}")
        a(f"s_cmp_lt_u32 {sr(D)}, 544")
        a(f"s_cselect_b32 {sr(sRL+2)}, {640*1280}, 0")
        a(f"s_cselect_b32 {sr(sRD+2)}, {WS_SIZE}, 0")
        a(f"s_cselect_b32 {sr(D)}, {sr(D)}, 384")
        a(f"s_sub_u32 {sr(D)}, {sr(D)}, 384")
        a(f"s_cmp_ge_u32 {sr(D)}, 80")
        a(f"s_cselect_b32 {sr(P)}, {KH - 80*640}, 0")
        a(f"s_mul_i32 {sr(sRLD)}, {sr(D)}, 640")
        a(f"s_add_u32 {sr(sRLD)}, {sr(sRLD)}, {sr(P)}")
        a(f"s_add_u32 {sr(sRLD)}, {sr(sRLD)}, {24*5120}")
        a(f"s_bfe_u32 {sr(E)}, {sr(D)}, 0x10001")
        a(f"s_lshr_b32 {sr(O_)}, {sr(D)}, 2")
        a(f"s_lshl_b32 {sr(O_)}, {sr(O_)}, 1")
        a(f"s_and_b32 {sr(G_)}, {sr(D)}, 1")
        a(f"s_add_u32 {sr(O_)}, {sr(O_)}, {sr(G_)}")
        a(f"s_mul_i32 {sr(P)}, {sr(O_)}, 205")
        a(f"s_lshr_b32 {sr(P)}, {sr(P)}, 10")
        a(f"s_mul_i32 {sr(G_)}, {sr(P)}, 5")
        a(f"s_sub_u32 {sr(O_)}, {sr(O_)}, {sr(G_)}")
        a(f"s_mul_i32 {sr(P)}, {sr(P)}, 40")
        a(f"s_lshr_b32 {sr(G_)}, {sr(O_)}, 1")
        a(f"s_mul_i32 {sr(G_)}, {sr(G_)}, 20")
        a(f"s_and_b32 {sr(sT5)}, {sr(O_)}, 1")
        a(f"s_lshl_b32 {sr(sT5)}, {sr(sT5)}, 2")
        a(f"s_add_u32 {sr(G_)}, {sr(G_)}, {sr(sT5)}")
        a(f"s_lshl_b32 {sr(sT5)}, {sr(E)}, 3")
        a(f"s_add_u32 {sr(G_)}, {sr(G_)}, {sr(sT5)}")
        a(f"s_mul_i32 {sr(E)}, {sr(E)}, 20")
        a(f"s_add_u32 {sr(E)}, {sr(E)}, 16")
        a(f"s_cmp_eq_u32 {sr(O_)}, 4")
        a(f"s_cselect_b32 {sr(G_)}, {sr(E)}, {sr(G_)}")
        a(f"s_add_u32 {sr(sRLS)}, {sr(P)}, {sr(G_)}")
        a.label("L_rl_done")
        a(f"s_mul_i32 {sr(sRLS)}, {sr(sRLS)}, 1280")
        a(f"s_add_u32 {sr(sRLD)}, {sr(sRLD)}, {WS_W}")
        a(f"s_mov_b32 {sr(sT0)}, {SL}")

    def relayout_load(self, n):
        a = self.a
        a(f"v_add_u32 {vr(vT0)}, {64*n}, {vr(vLANE)}")
        a(f"v_mul_u32_u24 {vr(vT1)}, 0xcd, {vr(vT0)}")
        a(f"v_lshrrev_b32 {vr(vT1)}, 13, {vr(vT1)}")
        a(f"v_mul_u32_u24 {vr(vRLA+n)}, 40, {vr(vT1)}")
        a(f"v_sub_u32 {vr(vT0)}, {vr(vT0)}, {vr(vRLA+n)}")
        a(f"v_mul_lo_u32 {vr(vRLA+5+n)}, {vr(vT1)}, {sr(sT0)}")
        a(f"v_lshl_add_u32 {vr(vRLA+5+n)}, {vr(vT0)}, 4, {vr(vRLA+5+n)}")
        a(f"v_mul_u32_u24 {vr(vRLA+n)}, 0xcd, {vr(vT0)}")
        a(f"v_lshrrev_b32 {vr(vRLA+n)}, 11, {vr(vRLA+n)}")
        a(f"v_mul_u32_u24 {vr(vRLA+n)}, {1280-160}, {vr(vRLA+n)}")
        a(f"v_lshl_add_u32 {vr(vRLA+n)}, {vr(vT0)}, 4, {vr(vRLA+n)}")
        a(f"v_mul_u32_u24 {vr(vT1)}, 160, {vr(vT1)}")
        a(f"v_add_u32 {vr(vRLA+n)}, {vr(vRLA+n)}, {vr(vT1)}")
        a.vmem(f"buffer_load_dwordx4 {vr(vRL+4*n,4)}, {vr(vRLA+n)}, {sr(sRL,4)}, {sr(sRLS)} offen", "RL")

    def spin(self, label, issue, test):
        a = self.a
        a(f"s_mov_b32 {sr(sSPIN)}, 0")
        a.label(label)
        a.wait_all(lg=False)
        test()
        a(f"s_cbranch_vccz {label}_ok")
        a(f"s_add_u32 {sr(sSPIN)}, {sr(sSPIN)}, 1")
        a(f"s_cmp_ge_u32 {sr(sSPIN)}, {SPIN_MAX}")
        a(f"s_cbranch_scc1 {label}_ok")
        issue()
        a(f"s_branch {label}")
        a.label(label + "_ok")
        a.vm.clear()

    def kv_loads(self, n):
        a = self.a
        b = aKV + 14 * (n % 4)
        tag = f"KV{n}"

        def k16():
            a.vmem(f"buffer_load_dwordx4 {ar(b,4)}, {vr(vL16)}, {sr(sWS,4)}, {sr(sKVT)} offen sc1", tag)

        def k8():
            a.vmem(f"buffer_load_dwordx2 {ar(b+12,2)}, {vr(vKVK8)}, {sr(sWS,4)}, {sr(sKVT)} offen offset:3072 sc1", tag)

        def v0():
            a.vmem(f"buffer_load_dwordx4 {ar(b+4,4)}, {vr(vKVV)}, {sr(sWS,4)}, {sr(sKVT)} offen offset:1024 sc1", tag)

        def v1():
            a.vmem(f"buffer_load_dwordx4 {ar(b+8,4)}, {vr(vKVV)}, {sr(sWS,4)}, {sr(sKVT)} offen offset:2048 sc1", tag)

        def adv():
            a(f"s_add_u32 {sr(sKVT)}, {sr(sKVT)}, 8192")
            a(f"s_and_b32 {sr(sKVT)}, {sr(sKVT)}, 0x3ffff")
        return k16, k8, v0, v1, adv

    def kv_start(self):
        a = self.a
        a(f"s_lshl_b32 {sr(sKVT)}, {sr(sI)}, 1")
        a(f"s_add_u32 {sr(sKVT)}, {sr(sKVT)}, {sr(sCH)}")
        a(f"s_lshl_b32 {sr(sKVT)}, {sr(sKVT)}, 12")

    def ffn1(self):
        a = self.a
        a.label("L_ffn1")
        fill = []

        def q_read():
            a(f"s_xor_b32 {sr(sT0)}, {sr(sW)}, 2")
            a(f"s_mul_i32 {sr(sT0)}, {sr(sT0)}, 3072")
            a(f"s_add_u32 {sr(sT0)}, {sr(sT0)}, {XCH}")
            a(f"v_add_u32 {vr(vT0)}, {sr(sT0)}, {vr(vL16)}")
            for n in range(3):
                a.ds(f"ds_read_b128 {vr(vQ+12+4*n,4)}, {vr(vT0)} offset:{1024*n}", "QR")

        def kv_signal():
            a(f"s_cmp_eq_u32 {sr(sROLE)}, 0")
            a("s_cbranch_scc1 L_nosig")
            a(f"s_lshl_b32 {sr(sT0)}, {sr(sI)}, 1")
            a(f"s_add_u32 {sr(sT0)}, {sr(sT0)}, {sr(sT)}")
            a(f"s_lshl_b32 {sr(sT0)}, {sr(sT0)}, 2")
            a(f"v_mov_b32 {vr(vT0)}, 1")
            a("s_mov_b64 exec, 1")
            a(f"buffer_atomic_add {vr(vT0)}, off, {sr(sDBG,4)}, {sr(sT0)} sc1")
            a("s_mov_b64 exec, -1")
            a.label("L_nosig")

        def poll_issue():
            a.vmem(f"buffer_load_dword {vr(vPOLL)}, {vr(vT1)}, {sr(sDBG,4)}, 0 offen sc1", "POLL")

        for U in range(40, 80):
            n, s = U // 4, U % 4
            ab = {10: q_read, 12: kv_signal}.get(n)
            if U == 64:
                self.relayout_setup()
            if 65 <= U < 70:
                fill.append(lambda k=U-65: self.relayout_load(k))
            if U == 78:
                a(f"v_lshlrev_b32 {vr(vT1)}, 2, {vr(vLANE)}")
                poll_issue()
            self.p1_step(U, 0, fill, ab)
        while fill:
            fill.pop(0)()
        self.stamp(2)
        a(f"v_mov_b32 {vr(vIDX)}, 0xdddd")
        a(f"v_lshlrev_b32 {vr(vKVK8)}, 3, {vr(vLANE)}")
        a(f"v_and_b32 {vr(vKVV)}, 31, {vr(vLANE)}")
        a(f"v_min_u32 {vr(vKVV)}, 20, {vr(vKVV)}")
        a(f"v_and_or_b32 {vr(vKVV)}, {vr(vLANE)}, 32, {vr(vKVV)}")
        a(f"v_lshlrev_b32 {vr(vKVV)}, 4, {vr(vKVV)}")
        self.kv_start()

        def test():
            a(f"v_and_b32 {vr(vPOLL)}, 0xff, {vr(vPOLL)}")
            a(f"v_cmp_ne_u32 vcc, 2, {vr(vPOLL)}")
            a("s_nop 4")
        self.spin("L_kvpoll", poll_issue, test)
        self.stamp(3)
        for n in range(3):
            for f in self.kv_loads(n):
                f()
        a(f"s_mul_i32 {sr(sT0)}, {sr(sI)}, 196608")
        a(f"s_mul_i32 {sr(sT1)}, {sr(sT)}, {2*49152}")
        a(f"s_add_u32 {sr(sT0)}, {sr(sT0)}, {sr(sT1)}")
        a(f"s_mul_i32 {sr(sT1)}, {sr(sJ)}, 6144")
        a(f"s_add_u32 {sr(sT0)}, {sr(sT0)}, {sr(sT1)}")
        a(f"s_mul_i32 {sr(sT1)}, {sr(sCH)}, 3072")
        a(f"s_add_u32 {sr(sT0)}, {sr(sT0)}, {sr(sT1)}")
        a(f"s_add_u32 {sr(sT0)}, {sr(sT0)}, {WS_H}")
        a(f"v_bfe_u32 {vr(vT0)}, {vr(vLANE)}, 4, 1")
        a(f"v_mul_u32_u24 {vr(vT0)}, 49152, {vr(vT0)}")
        a(f"v_lshrrev_b32 {vr(vT1)}, 5, {vr(vLANE)}")
        a(f"v_lshl_add_u32 {vr(vT0)}, {vr(vT1)}, 8, {vr(vT0)}")
        a(f"v_and_b32 {vr(vT1)}, 15, {vr(vLANE)}")
        a(f"v_lshl_add_u32 {vr(vT0)}, {vr(vT1)}, 4, {vr(vT0)}")
        for ct in range(3):
            for c in range(2):
                b = vF + 16 * ct + 8 * c
                for p in range(4):
                    a(f"v_cvt_pk_bf16_f32 {vr(b+p)}, {vr(b+2*p)}, {vr(b+2*p+1)}")
                for p in range(4):
                    a(f"v_pk_max_i16 {vr(b+p)}, {vr(b+p)}, 0 op_sel_hi:[1,0]")
                a.vmem(f"buffer_store_dwordx4 {vr(b,4)}, {vr(vT0)}, {sr(sWS,4)}, {sr(sT0)} offen offset:{1024*ct+512*c} sc1", "PUB")
        for n in range(5):
            a.vmem(f"buffer_store_dwordx4 {vr(vRL+4*n,4)}, {vr(vRLA+5+n)}, {sr(sRD,4)}, {sr(sRLD)} offen sc1", "PUB")
        a(f"s_mul_i32 {sr(sHO0)}, {sr(sI)}, 196608")
        a(f"s_mul_i32 {sr(sT1)}, {sr(sCH)}, {24*1024}")
        a(f"s_add_u32 {sr(sHO0)}, {sr(sHO0)}, {sr(sT1)}")
        a(f"s_add_u32 {sr(sHO0)}, {sr(sHO0)}, {WS_H}")
        a(f"s_lshl_b32 {sr(sT0)}, {sr(sT)}, 1")
        a(f"s_add_u32 {sr(sT0)}, {sr(sT0)}, {sr(sCH)}")
        a(f"s_xor_b32 {sr(sT1)}, {sr(sT0)}, 1")
        a(f"s_mul_i32 {sr(sT0)}, {sr(sT0)}, 49152")
        a(f"s_mul_i32 {sr(sT1)}, {sr(sT1)}, 49152")
        a(f"s_add_u32 {sr(sHO1)}, {sr(sHO0)}, {sr(sT1)}")
        a(f"s_add_u32 {sr(sHO0)}, {sr(sHO0)}, {sr(sT0)}")
        a(f"s_mul_i32 {sr(sWRO)}, {sr(sJ)}, {SL}")
        a(f"s_mul_i32 {sr(sT0)}, {sr(sCH)}, {KH}")
        a(f"s_add_u32 {sr(sWRO)}, {sr(sWRO)}, {sr(sT0)}")
        a(f"s_mul_i32 {sr(sT0)}, {sr(sT)}, 5120")
        a(f"s_add_u32 {sr(sWRO)}, {sr(sWRO)}, {sr(sT0)}")
        a(f"s_add_u32 {sr(sWRO)}, {sr(sWRO)}, {WS_W}")
        a(f"s_mul_i32 {sr(sWRM)}, {sr(sCH)}, {REGION}")
        a(f"s_add_u32 {sr(sWRM)}, {sr(sWRM)}, {sr(sT0)}")

    def qk(self, tau):
        n, q = tau // 4, tau % 4
        b = aKV + 14 * (n % 4)
        S = vr(vS + 16 * q, 16)
        return (f"v_mfma_f32_32x32x8_bf16 {S}, {ar(b+12,2)}, {vr(vQ+6*q+4,2)}, 0",
                f"v_mfma_f32_32x32x16_bf16 {S}, {ar(b,4)}, {vr(vQ+6*q,4)}, {S}")

    def pv(self, tau, f):
        n, q = tau // 4, tau % 4
        b = aKV + 14 * (n % 4)
        return f"v_smfmac_f32_32x32x32_bf16 {vr(vO+16*q,16)}, {ar(b+4+4*f,4)}, {vr(vS+16*q+8*f,8)}, {vr(vIDX)}"

    def wr_dma(self, rnd):
        a = self.a
        slot = (rnd % 6) * 10240
        tag = f"WR{rnd}"

        def mk(n):
            def f():
                if n == 0:
                    a(f"s_add_u32 m0, {sr(sWRM)}, {slot}")
                    a(f"s_add_u32 {sr(sT5)}, {sr(sWRO)}, 4096")
                if n == 4:
                    a(f"s_add_u32 m0, {sr(sWRM)}, {slot+4096}")
                    a(f"s_add_u32 {sr(sWRO)}, {sr(sWRO)}, 10240")
                    a.vmem(f"buffer_load_dwordx4 {vr(vL16)}, {sr(sWS,4)}, {sr(sT5)} offen sc1 lds", tag)
                else:
                    off = f" offset:{1024*n}" if n else ""
                    a.vmem(f"buffer_load_dwordx4 {vr(vL16)}, {sr(sWS,4)}, {sr(sWRO)} offen{off} sc1 lds", tag)
            return f
        return [mk(n) for n in range(5)]

    def h_load(self, k):
        a = self.a
        ks, rr = k // 2, k % 2
        so = sHO1 if rr else sHO0

        def f():
            off = f" offset:{1024*(ks%4)}" if ks % 4 else ""
            a.vmem(f"buffer_load_dwordx4 {ar(aH+4*k,4)}, {vr(vL16)}, {sr(sWS,4)}, {sr(so)} offen{off} sc1", f"H{ks}")
            if ks % 4 == 3:
                a(f"s_add_u32 {sr(so)}, {sr(so)}, 4096")
        return f

    def attention(self):
        a = self.a
        o = self.o
        a.wait(vm="KV0", lg="QR")
        for tau in range(2):
            m8, m16 = self.qk(tau)
            a(m8)
            a(m16)
        a("s_nop 8")
        self.stamp(4)
        extra = []
        ex = lambda tau, e: a(f"v_exp_f32 {vr(vS+16*(tau%4)+e)}, {vr(vS+16*(tau%4)+e)}")

        def bpoll_issue():
            a.vmem(f"buffer_load_dword {vr(vPOLL)}, {vr(vT1)}, {sr(sDBG,4)}, 0 offen sc1", "POLL")

        a(f"v_lshlrev_b32 {vr(vT1)}, 2, {vr(vLANE)}")
        for n in range(32):
            if n == o["h_start"]:
                def test():
                    a(f"v_cmp_ne_u32 vcc, 0x402, {vr(vPOLL)}")
                    a("s_nop 4")
                a.wait(vm="POLL")
                snap = a.snapshot()
                test()
                a("s_cbranch_vccz L_bpoll_done")
                bpoll_issue()
                self.spin("L_bpoll", bpoll_issue, test)
                a.label("L_bpoll_done")
                a.restore(snap)
                hl = [self.h_load(k) for k in range(48)]
                wl = sum([self.wr_dma(r) for r in range(6)], [])
                while hl or wl:
                    extra += hl[:3] + wl[:2]
                    hl, wl = hl[3:], wl[2:]
            kvl = list(self.kv_loads(n + 3)) if n + 3 < 32 else [None] * 5
            quota = 5
            for q in range(4):
                tau = 4 * n + q
                sh = {0: [kvl[0], kvl[1]], 1: [kvl[2], kvl[3]], 2: [None, None], 3: [None, None]}[q]

                def take():
                    nonlocal quota
                    if extra and quota:
                        extra.pop(0)()
                        quota -= 1
                ex(tau, 0)
                ex(tau, 1)
                if tau:
                    a(self.pv(tau - 1, 1))
                if sh[0]:
                    sh[0]()
                if q == 2:
                    if n + 1 < 32:
                        a.wait(vm=f"KV{n+1}")
                    if n == o["sig_kt"]:
                        a.wait(vm="PUB")
                        a("s_barrier")
                        a(f"s_cmp_lg_u32 {sr(sW)}, 0")
                        a("s_cbranch_scc1 L_nosigb")
                        a(f"s_lshl_b32 {sr(sT0)}, {sr(sI)}, 1")
                        a(f"s_and_b32 {sr(sT1)}, {sr(sJ)}, 1")
                        a(f"s_add_u32 {sr(sT0)}, {sr(sT0)}, {sr(sT1)}")
                        a(f"s_lshl_b32 {sr(sT0)}, {sr(sT0)}, 2")
                        a(f"v_mov_b32 {vr(vT0)}, 0x100")
                        a("s_mov_b64 exec, 1")
                        a(f"buffer_atomic_add {vr(vT0)}, off, {sr(sDBG,4)}, {sr(sT0)} sc1")
                        a("s_mov_b64 exec, -1")
                        a.label("L_nosigb")
                if q == 3:
                    take()
                for e in (2, 3, 4):
                    ex(tau, e)
                if tau + 2 < 128:
                    m8, m16 = self.qk(tau + 2)
                    a(m8)
                for e in (5, 6, 7, 8):
                    ex(tau, e)
                if tau + 2 < 128:
                    a(m16)
                if q == 1 and kvl[4]:
                    pass
                if q >= 2:
                    take()
                for e in (9, 10, 11, 12):
                    ex(tau, e)
                a(self.pv(tau, 0))
                if sh[1]:
                    sh[1]()
                if q == 1 and kvl[4]:
                    kvl[4]()
                if q >= 2:
                    take()
                if q == 3 and n == o["poll_kt"]:
                    bpoll_issue()
                for e in (13, 14, 15):
                    ex(tau, e)
        assert not extra
        a("s_nop 1")
        a(self.pv(127, 1))
        self.stamp(5)

    def attn_epilogue(self):
        a = self.a
        P = vF
        a(f"s_mul_i32 {sr(sT0)}, {sr(sW)}, 6144")
        a(f"s_add_u32 {sr(sT0)}, {sr(sT0)}, {XCH}")
        a(f"v_add_u32 {vr(vXW)}, {sr(sT0)}, {vr(vL16)}")
        a(f"s_xor_b32 {sr(sT0)}, {sr(sW)}, 2")
        a(f"s_mul_i32 {sr(sT0)}, {sr(sT0)}, 6144")
        a(f"s_add_u32 {sr(sT0)}, {sr(sT0)}, {XCH}")
        a(f"v_add_u32 {vr(vXRD)}, {sr(sT0)}, {vr(vL16)}")
        a(f"s_mov_b32 {sr(sT2)}, {hex(f2u(2.0**-21))}")
        a(f"s_mov_b32 {sr(sT3)}, {hex(f2u(2.0**39))}")
        a(f"s_lshl_b32 {sr(sT0)}, {sr(sW)}, 2")
        a(f"s_add_u32 {sr(sT0)}, {sr(sT0)}, {BADF}")
        a(f"v_mov_b32 {vr(vT0)}, {sr(sT0)}")
        a.label("L_xch")
        a(f"v_min3_f32 {vr(vT1)}, {vr(vO+8)}, {vr(vO+24)}, {vr(vO+40)}")
        a(f"v_max3_f32 {vr(vPOLL)}, {vr(vO+8)}, {vr(vO+24)}, {vr(vO+40)}")
        a(f"v_add_f32 {vr(vG0)}, {vr(vO+8)}, {vr(vO+24)}")
        a(f"v_add_f32 {vr(vG0+1)}, {vr(vO+40)}, {vr(vO+56)}")
        a(f"v_min_f32 {vr(vT1)}, {vr(vT1)}, {vr(vO+56)}")
        a(f"v_max_f32 {vr(vPOLL)}, {vr(vPOLL)}, {vr(vO+56)}")
        a(f"v_cmp_nge_f32_e64 {sr(sM0,2)}, {vr(vT1)}, {sr(sT2)}")
        a(f"v_cmp_nle_f32_e64 {sr(sM1,2)}, {vr(vPOLL)}, {sr(sT3)}")
        a(f"v_cmp_u_f32 vcc, {vr(vG0)}, {vr(vG0+1)}")
        for q in (2, 3):
            for n in range(3):
                a.ds(f"ds_write_b128 {vr(vXW)}, {vr(vO+16*q+4*n,4)} offset:{1024*(3*(q-2)+n)}", "XW")
        a(f"s_or_b64 {sr(sM0,2)}, {sr(sM0,2)}, {sr(sM1,2)}")
        a(f"s_or_b64 {sr(sM0,2)}, {sr(sM0,2)}, vcc")
        if self.o["force_slow"]:
            a(f"s_mov_b32 {sr(sM0+1)}, 1")
        a(f"v_mov_b32 {vr(vT1)}, {sr(sM0+1)}")
        a.ds(f"ds_write_b32 {vr(vT0)}, {vr(vT1)}", "XW")
        a.wait(vm="WR5", lg="XW")
        a("s_barrier")
        a(f"v_mov_b32 {vr(vT1)}, {BADF}")
        a.ds(f"ds_read_b128 {vr(vS,4)}, {vr(vT1)}", "XB")
        for k in range(6):
            a.ds(f"ds_read_b128 {vr(P+4*k,4)}, {vr(vXRD)} offset:{1024*k}", f"XR{k}")
        a(f"v_and_b32 {vr(vT1)}, 31, {vr(vLANE)}")
        a(f"s_lshl_b32 {sr(sT0)}, {sr(sT)}, 7")
        a(f"s_add_u32 {sr(sT0)}, {sr(sT0)}, {GARR}")
        a(f"v_lshl_add_u32 {vr(vT1)}, {vr(vT1)}, 2, {sr(sT0)}")
        a.ds(f"ds_read_b32 {vr(vG0)}, {vr(vT1)}", "XG")
        a.wait(lg="XB")
        a(f"v_or3_b32 {vr(vS)}, {vr(vS)}, {vr(vS+1)}, {vr(vS+2)}")
        a(f"v_or_b32 {vr(vS)}, {vr(vS)}, {vr(vS+3)}")
        a("s_nop 0")
        a(f"v_readfirstlane_b32 {sr(sT0)}, {vr(vS)}")
        a("s_nop 3")
        a(f"s_cmp_eq_u32 {sr(sSLOW)}, 1")
        a(f"s_cselect_b32 {sr(sT0)}, 0, {sr(sT0)}")
        a(f"s_cmp_lg_u32 {sr(sT0)}, 0")
        a("s_cbranch_scc1 L_slow")
        self.xch_snap = a.snapshot()
        a(f"s_mul_i32 {sr(sT0)}, {sr(sI)}, 81920")
        a(f"s_mul_i32 {sr(sT1)}, {sr(sT)}, 40960")
        a(f"s_add_u32 {sr(sT0)}, {sr(sT0)}, {sr(sT1)}")
        a(f"s_mul_i32 {sr(sT1)}, {sr(sJ)}, 2560")
        a(f"s_add_u32 {sr(sT0)}, {sr(sT0)}, {sr(sT1)}")
        a(f"s_mul_i32 {sr(sT1)}, {sr(sCH)}, 1280")
        a(f"s_add_u32 {sr(sT0)}, {sr(sT0)}, {sr(sT1)}")
        a(f"s_add_u32 {sr(sT0)}, {sr(sT0)}, {WS_O}")
        a(f"v_bfe_u32 {vr(vT0)}, {vr(vLANE)}, 4, 1")
        a(f"v_mul_u32_u24 {vr(vT0)}, 20480, {vr(vT0)}")
        a(f"v_lshrrev_b32 {vr(vT1)}, 5, {vr(vLANE)}")
        a(f"v_lshl_add_u32 {vr(vT0)}, {vr(vT1)}, 8, {vr(vT0)}")
        a(f"v_and_b32 {vr(vT1)}, 15, {vr(vLANE)}")
        a(f"v_lshl_add_u32 {vr(vT0)}, {vr(vT1)}, 4, {vr(vT0)}")
        R = vS + 32
        for q in range(2):
            a.wait(lg=f"XR{3*q+2}")
            l0, l1 = vS + 8 + 2 * q, vS + 9 + 2 * q
            a(f"v_add_f32 {vr(l0)}, {vr(vO+16*q+8)}, {vr(P+12*q+8)}")
            a(f"v_add_f32 {vr(l1)}, {vr(vO+16*q+8)}, {vr(P+12*q+8)}")
            for r in range(0, 4, 2):
                a(f"v_pk_add_f32 {vr(vO+16*q+r,2)}, {vr(vO+16*q+r,2)}, {vr(P+12*q+r,2)}")
            a(f"v_permlane32_swap_b32 {vr(l0)}, {vr(l1)}")
            for r in range(4, 12, 2):
                a(f"v_pk_add_f32 {vr(vO+16*q+r,2)}, {vr(vO+16*q+r,2)}, {vr(P+12*q+r,2)}")
            a(f"v_rcp_f32 {vr(l1)}, {vr(l1)}")
            if q == 0:
                a.wait(lg="XG")
            else:
                a("s_nop 0")
            a(f"v_mul_f32 {vr(l0)}, {vr(l1)}, {vr(vG0)}")
            for r in range(0, 12, 2):
                a(f"v_pk_mul_f32 {vr(vO+16*q+r,2)}, {vr(vO+16*q+r,2)}, {vr(l0,2)} op_sel_hi:[1,0]")
            for p in range(6):
                d = R + 4 * q + p if p < 4 else R + 8 + 2 * q + (p - 4)
                a(f"v_cvt_pk_bf16_f32 {vr(d)}, {vr(vO+16*q+2*p)}, {vr(vO+16*q+2*p+1)}")
            a.vmem(f"buffer_store_dwordx4 {vr(R+4*q,4)}, {vr(vT0)}, {sr(sWS,4)}, {sr(sT0)} offen offset:{512*q} sc1", "OPUB")
        a("s_mov_b32 exec_hi, 0")
        a.vmem(f"buffer_store_dwordx4 {vr(R+8,4)}, {vr(vT0)}, {sr(sWS,4)}, {sr(sT0)} offen offset:1024 sc1", "OPUB")
        a("s_mov_b32 exec_hi, -1")
        self.stamp(6)

    def w_reads(self, ks):
        a = self.a
        slot = (ks % 12) * 5120
        wf = vW2 + 20 * (ks % 2)
        for ct in range(5):
            for e in range(2):
                a.ds(f"ds_read_b64_tr_b16 {vr(wf+4*ct+2*e,2)}, {vr(vP2R)} offset:{slot + 1280*e + 8*ct}", f"W{ks}")

    def phase2(self):
        a = self.a
        o = self.o
        a(f"v_lshrrev_b32 {vr(vT0)}, 5, {vr(vLANE)}")
        a(f"v_bfe_u32 {vr(vT1)}, {vr(vLANE)}, 2, 3")
        a(f"v_lshl_add_u32 {vr(vT0)}, {vr(vT0)}, 4, {vr(vT1)}")
        a(f"v_mul_u32_u24 {vr(vT0)}, 160, {vr(vT0)}")
        a(f"v_and_b32 {vr(vT1)}, 3, {vr(vLANE)}")
        a(f"v_mad_u32_u24 {vr(vT0)}, {vr(vT1)}, 40, {vr(vT0)}")
        a(f"s_mul_i32 {sr(sT0)}, {sr(sCH)}, {REGION}")
        a(f"v_add_u32 {vr(vP2R)}, {sr(sT0)}, {vr(vT0)}")
        self.w_reads(0)
        a(f"s_lshl_b32 {sr(sT0)}, {sr(sT)}, 1")
        a(f"s_add_u32 {sr(sT0)}, {sr(sT0)}, {sr(sCH)}")
        a(f"s_lshl_b32 {sr(sT1)}, {sr(sT0)}, 6")
        a(f"s_add_u32 {sr(sT1)}, {sr(sT1)}, {GARR}")
        a(f"v_and_b32 {vr(vT1)}, 15, {vr(vLANE)}")
        a(f"v_lshl_add_u32 {vr(vT0)}, {vr(vT1)}, 2, {sr(sT1)}")
        a.ds(f"ds_read_b32 {vr(vG0)}, {vr(vT0)}", "W0")
        a(f"v_xor_b32 {vr(vT0)}, 64, {vr(vT0)}")
        a.ds(f"ds_read_b32 {vr(vG1)}, {vr(vT0)}", "W0")
        a(f"s_lshl_b32 {sr(sT1)}, {sr(sI)}, 2")
        a(f"s_add_u32 {sr(sT1)}, {sr(sT1)}, {sr(sT0)}")
        a(f"s_mul_i32 {sr(sT1)}, {sr(sT1)}, {16*1280}")
        a(f"s_mul_i32 {sr(sT2)}, {sr(sJ)}, 160")
        a(f"s_add_u32 {sr(sKVN)}, {sr(sT1)}, {sr(sT2)}")
        a(f"v_mul_u32_u24 {vr(vT1)}, 1280, {vr(vT1)}")
        a(f"v_lshrrev_b32 {vr(vT0)}, 4, {vr(vLANE)}")
        a(f"v_mad_u32_u24 {vr(vOUTA)}, {vr(vT0)}, 40, {vr(vT1)}")
        a(f"s_mul_i32 {sr(sHO0)}, {sr(sI)}, 81920")
        a(f"s_mul_i32 {sr(sT1)}, {sr(sCH)}, 10240")
        a(f"s_add_u32 {sr(sHO0)}, {sr(sHO0)}, {sr(sT1)}")
        a(f"s_add_u32 {sr(sHO0)}, {sr(sHO0)}, {WS_O}")
        a(f"s_xor_b32 {sr(sT1)}, {sr(sT0)}, 1")
        a(f"s_mul_i32 {sr(sT0)}, {sr(sT0)}, 20480")
        a(f"s_mul_i32 {sr(sT1)}, {sr(sT1)}, 20480")
        a(f"s_add_u32 {sr(sHO1)}, {sr(sHO0)}, {sr(sT1)}")
        a(f"s_add_u32 {sr(sHO0)}, {sr(sHO0)}, {sr(sT0)}")
        a(f"s_lshl_b32 {sr(sKVT)}, {sr(sI)}, 7")
        a(f"s_add_u32 {sr(sKVT)}, {sr(sKVT)}, {WS_F}")
        a(f"s_lshl_b32 {sr(sT0)}, {sr(sCH)}, 4")
        a(f"s_add_u32 {sr(sRLS)}, {sr(sKVT)}, {sr(sT0)}")
        a(f"s_lshl_b32 {sr(sT0)}, {sr(sJ)}, 2")
        a(f"s_add_u32 {sr(sRLD)}, {sr(sKVT)}, {sr(sT0)}")
        vFL = 72

        def opoll_issue():
            a.vmem(f"buffer_load_dwordx4 {vr(vFL,4)}, off, {sr(sWS,4)}, {sr(sRLS)} sc1", "POLL")

        def otest():
            a(f"v_and_b32 {vr(vFL)}, {vr(vFL)}, {vr(vFL+1)}")
            a(f"v_and_b32 {vr(vFL+2)}, {vr(vFL+2)}, {vr(vFL+3)}")
            a(f"v_and_b32 {vr(vFL)}, {vr(vFL)}, {vr(vFL+2)}")
            a(f"v_cmp_ne_u32 vcc, 1, {vr(vFL)}")
            a("s_nop 4")

        def o_load(k):
            ks, rr = k // 2, k % 2
            so = sHO1 if rr else sHO0

            def f():
                off = f" offset:{1024*(ks%4)}" if ks % 4 else ""
                a.vmem(f"buffer_load_dwordx4 {vr(vOF+4*k,4)}, {vr(vL16)}, {sr(sWS,4)}, {sr(so)} offen{off} sc1", f"O{ks}")
                if ks % 4 == 3:
                    a(f"s_add_u32 {sr(so)}, {sr(so)}, 4096")
            return f

        fill = []
        for ks in range(34):
            r, last = ks // 2, ks % 2 == 1
            if last and r < 16:
                tags = [f"WR{r+1}"] + (["OPUB"] if r == o["oflag_round"] else [])
                a.wait(vm=tags)
                a("s_barrier")
                if r == o["oflag_round"]:
                    a(f"s_cmp_lg_u32 {sr(sW)}, 0")
                    a("s_cbranch_scc1 L_nosigo")
                    a(f"v_mov_b32 {vr(vT0)}, 1")
                    a("s_mov_b64 exec, 1")
                    a(f"buffer_store_dword {vr(vT0)}, off, {sr(sWS,4)}, {sr(sRLD)} sc1")
                    a("s_mov_b64 exec, -1")
                    a.label("L_nosigo")
                if r >= 1 and r + 5 <= 16:
                    fill += self.wr_dma(r + 5)
            if ks == 2 * o["opoll_round"] - 2:
                opoll_issue()
            if ks == 2 * o["opoll_round"]:
                a.wait(vm="POLL")
                snap = a.snapshot()
                otest()
                a("s_cbranch_vccz L_opoll_done")
                opoll_issue()
                self.spin("L_opoll", opoll_issue, otest)
                a.label("L_opoll_done")
                a.restore(snap)
                self.stamp(7)
                fill = [o_load(k) for k in range(20)] + fill
            if ks + 1 < 34:
                self.w_reads(ks + 1)
            a.wait(vm=(f"H{ks}" if ks < 24 else f"O{ks-24}"), lg=f"W{ks}")
            if ks == 0:
                a(f"v_sub_f32 {vr(vG0)}, 1.0, {vr(vG0)}")
                a(f"v_sub_f32 {vr(vG1)}, 1.0, {vr(vG1)}")
            wf = vW2 + 20 * (ks % 2)
            mf = []
            for ct in range(5):
                for rr in range(2):
                    acc = vACC + 20 * rr + 4 * ct
                    b = ar(aH + 4 * (2 * ks + rr), 4) if ks < 24 else vr(vOF + 4 * (2 * (ks - 24) + rr), 4)
                    cin = "0" if ks == 0 else vr(acc, 4)
                    mf.append((acc, rr, f"v_mfma_f32_16x16x32_bf16 {vr(acc,4)}, {vr(wf+4*ct,4)}, {b}, {cin}"))
            if ks == 24:
                self.stamp(8)
                for k in range(11):
                    if k < 10:
                        acc, rr, _ = mf[k]
                        g = vG1 if rr else vG0
                        for h in range(2):
                            a(f"v_pk_mul_f32 {vr(acc+2*h,2)}, {vr(acc+2*h,2)}, {vr(g,2)} op_sel_hi:[1,0]")
                    else:
                        a("s_nop 1")
                    if k:
                        a(mf[k-1][2])
            else:
                for k, (acc, rr, s) in enumerate(mf):
                    a(s)
                    if fill and k % 2 == 1:
                        fill.pop(0)()
        assert not fill
        self.stamp(9)
        a("s_nop 6")
        for ct in range(5):
            a.ds(f"ds_write_b128 {vr(vXW)}, {vr(vACC+20+4*ct,4)} offset:{1024*ct}", "FW")
        a.wait(lg="FW")
        a("s_barrier")
        P = vACC + 20
        for ct in range(5):
            a.ds(f"ds_read_b128 {vr(P+4*ct,4)}, {vr(vXRD)} offset:{1024*ct}", f"FR{ct}")
        R = vACC + 40
        for ct in range(5):
            a.wait(lg=f"FR{ct}")
            for h in range(2):
                a(f"v_pk_add_f32 {vr(vACC+4*ct+2*h,2)}, {vr(vACC+4*ct+2*h,2)}, {vr(P+4*ct+2*h,2)}")
            for h in range(2):
                a(f"v_cvt_pk_bf16_f32 {vr(R+2*ct+h)}, {vr(vACC+4*ct+2*h)}, {vr(vACC+4*ct+2*h+1)}")
            aux = (" " + o["out_aux"]) if o["out_aux"] else ""
            if ct == 1:
                a(f"buffer_store_dwordx4 {vr(R,4)}, {vr(vOUTA)}, {sr(sOUT,4)}, {sr(sKVN)} offen{aux}")
            if ct == 3:
                a(f"buffer_store_dwordx4 {vr(R+4,4)}, {vr(vOUTA)}, {sr(sOUT,4)}, {sr(sKVN)} offen offset:16{aux}")
            if ct == 4:
                a(f"buffer_store_dwordx2 {vr(R+8,2)}, {vr(vOUTA)}, {sr(sOUT,4)}, {sr(sKVN)} offen offset:32{aux}")
        if o["stamps"]:
            self.stamp(10)
            a(f"s_memrealtime {sr(sTS,2)}")
            a("s_waitcnt lgkmcnt(0)")
            a(f"v_writelane_b32 v0, {sr(sTS)}, 12")
            a(f"s_lshl_b32 {sr(sT0)}, s2, 2")
            a(f"s_add_u32 {sr(sT0)}, {sr(sT0)}, {sr(sW)}")
            a(f"s_lshl_b32 {sr(sT0)}, {sr(sT0)}, 8")
            a(f"s_add_u32 {sr(sT0)}, {sr(sT0)}, {WS_T}")
            a(f"v_lshlrev_b32 {vr(vT0)}, 2, {vr(vLANE)}")
            a(f"buffer_store_dword v0, {vr(vT0)}, {sr(sWS,4)}, {sr(sT0)} offen")
        a.label("L_end")
        a("s_endpgm")

    def slow(self):
        a = self.a
        a.label("L_slow")
        a.wait_all()
        a("s_barrier")
        a(f"s_mov_b32 {sr(sSLOW)}, 1")
        M = vF
        k16, k8, v0, v1, adv = self.kv_loads(0)
        for q in range(4):
            a(f"v_mov_b32 {vr(M+q)}, 0xff800000")
        self.kv_start()
        a(f"s_mov_b32 {sr(sKVN)}, 32")
        a.label("L_slow_max")
        k16(); k8(); adv()
        a.wait_all()
        for q in range(4):
            for s in self.qk(q):
                a(s)
        a("s_nop 15")
        for q in range(4):
            for r in range(0, 16, 2):
                a(f"v_max3_f32 {vr(M+q)}, {vr(vS+16*q+r)}, {vr(vS+16*q+r+1)}, {vr(M+q)}")
        a(f"s_sub_u32 {sr(sKVN)}, {sr(sKVN)}, 1")
        a(f"s_cmp_lg_u32 {sr(sKVN)}, 0")
        a("s_cbranch_scc1 L_slow_max")
        for q in range(4):
            a(f"v_mov_b32 {vr(M+4+q)}, {vr(M+q)}")
        a("s_nop 1")
        for q in range(4):
            a(f"v_permlane32_swap_b32 {vr(M+q)}, {vr(M+4+q)}")
        for q in range(4):
            a(f"v_max_f32 {vr(M+q)}, {vr(M+q)}, {vr(M+4+q)}")
        a(f"ds_write_b128 {vr(vXW)}, {vr(M,4)}")
        a.wait_all()
        a("s_barrier")
        a(f"ds_read_b128 {vr(M+4,4)}, {vr(vXRD)}")
        a.wait_all()
        for q in range(4):
            a(f"v_max_f32 {vr(M+q)}, {vr(M+q)}, {vr(M+4+(q^2))}")
        for q in range(4):
            m, hi, mid, lo = M + q, M + 8, M + 9, M + 10
            a(f"v_sub_f32 {vr(m)}, 0, {vr(m)}")
            a(f"v_and_b32 {vr(hi)}, 0xffff0000, {vr(m)}")
            a(f"v_sub_f32 {vr(m)}, {vr(m)}, {vr(hi)}")
            a(f"v_and_b32 {vr(mid)}, 0xffff0000, {vr(m)}")
            a(f"v_sub_f32 {vr(m)}, {vr(m)}, {vr(mid)}")
            a(f"v_lshrrev_b32 {vr(lo)}, 16, {vr(m)}")
            a(f"v_lshrrev_b32 {vr(hi)}, 16, {vr(hi)}")
            a(f"v_or_b32 {vr(hi)}, {vr(hi)}, {vr(mid)}")
            a(f"v_cndmask_b32_e64 {vr(vQ+6*q+4)}, {vr(vQ+6*q+4)}, {vr(hi)}, {sr(sHI,2)}")
            a(f"v_cndmask_b32_e64 {vr(vQ+6*q+5)}, {vr(vQ+6*q+5)}, {vr(lo)}, {sr(sHI,2)}")
        for q in range(4):
            for r in range(16):
                a(f"v_mov_b32 {vr(vO+16*q+r)}, 0")
        self.kv_start()
        a(f"s_mov_b32 {sr(sKVN)}, 32")
        a.label("L_slow_pv")
        k16(); k8(); v0(); v1(); adv()
        a.wait_all()
        for q in range(4):
            for s in self.qk(q):
                a(s)
        a("s_nop 15")
        for r in range(64):
            a(f"v_exp_f32 {vr(vS+r)}, {vr(vS+r)}")
        a("s_nop 1")
        for q in range(4):
            for f in range(2):
                a(self.pv(q, f))
        a(f"s_sub_u32 {sr(sKVN)}, {sr(sKVN)}, 1")
        a(f"s_cmp_lg_u32 {sr(sKVN)}, 0")
        a("s_cbranch_scc1 L_slow_pv")
        a("s_nop 15")
        a("s_barrier")
        a(f"s_lshl_b32 {sr(sT0)}, {sr(sW)}, 2")
        a(f"s_add_u32 {sr(sT0)}, {sr(sT0)}, {BADF}")
        a(f"v_mov_b32 {vr(vT0)}, {sr(sT0)}")
        a("s_branch L_xch")

    def build(self):
        a = self.a
        self.seg("pro"); self.prologue(); self.endseg()
        snap = a.snapshot()
        ends = []
        for role in (0, 1, 2):
            a.restore(snap)
            self.seg(f"q{role}"); self.qpass(role); self.endseg()
            ends.append([list(a.vm.q), list(a.lg.q)])
        assert ends[0] == ends[1] == ends[2], ends
        self.seg("main")
        self.ffn1()
        self.attention()
        self.attn_epilogue()
        self.phase2()
        self.endseg()
        self.seg("slow"); self.slow(); self.endseg()
        bad = []
        for role in range(3):
            bad += check_path(self.segs["pro"] + self.segs[f"q{role}"] + self.segs["main"], f"role{role}")
        m = self.segs["main"]
        i0, i1 = m.index("L_xch:"), m.index("s_cbranch_scc1 L_slow")
        bad += check_path(m[:i1 + 1] + self.segs["slow"] + m[i0:], "slow")
        for b in sorted(set(bad)):
            print("HAZARD", b, file=sys.stderr)
        head = open(os.path.join(os.path.dirname(os.path.abspath(__file__)), "..", "cdna_kernels", NAME + ".s.ref")).read()
        head = head[:head.index("; Override launch geometry")]
        txt = head + f"; @launch grid=(256,1,1) block=(256,1,1) lds={LDS_BYTES}\n"
        txt += f""".amdgcn_target "amdgcn-amd-amdhsa--gfx950"
.text
.globl {NAME}_kernel
.p2align 8
.type {NAME}_kernel,@function
{NAME}_kernel:
""" + a.text() + f""".section .rodata,"a"
.p2align 6
.amdhsa_kernel {NAME}_kernel
  .amdhsa_next_free_vgpr 512
  .amdhsa_next_free_sgpr 102
  .amdhsa_accum_offset 256
  .amdhsa_group_segment_fixed_size 0
  .amdhsa_kernarg_size 96
  .amdhsa_user_sgpr_count 2
  .amdhsa_user_sgpr_kernarg_segment_ptr 1
  .amdhsa_system_sgpr_workgroup_id_x 1
.end_amdhsa_kernel
"""
        return txt, bad


if __name__ == "__main__":
    import ast
    out = sys.argv[1]
    opt = {}
    for kv in sys.argv[2:]:
        k, v = kv.split("=", 1)
        try:
            v = ast.literal_eval(v)
        except Exception:
            pass
        opt[k] = v
    txt, bad = Gen(**opt).build()
    open(out, "w").write(txt)
    print("wrote", out, len(txt), "bytes;", len(bad), "hazards")
```

```python
import sys, os, math
sys.path.insert(0, os.path.dirname(os.path.abspath(__file__)))
from asmlib import *

NAME = "gated_mix__grouped_kv_mqa__dense_activation_relu__prompt"
OPT = dict(echo=None, echo_cyc=False, stamps=False, force_slow=False, out_aux="", h_start=12, sig_kt=2, poll_kt=10, oflag_round=3, opoll_round=10)

WS_KV = 0
WS_H = 1 << 20
WS_O = 8 << 20
WS_W = 12 << 20
WS_F = 16 << 20
WS_T = 17 << 20
WS_SIZE = 268435456
SL = 2176 * 160
KH = 34 * 5120
SLOT = 24576
GIMG = 5 * SLOT
GARR = GIMG + 1280
BADF = GARR + 256
XCH = BADF + 256
LDS_BYTES = XCH + 24576
HIB = 57344
REGION = 12 * 5120
sX, sWQ, sKV, sW1, sWS, sDBG, sOUT, sG, sRL, sRD = 4, 8, 12, 16, 20, 24, 28, 32, 36, 40
pWK, pWV, pWO, pW2 = 44, 46, 48, 50
sI, sJ, sW, sT, sCH, sROLE, sKL, sKC = 52, 53, 54, 55, 56, 57, 58, 59
sXO, sXO2, sWQO, sKVO, sW1O, sW1O2 = 60, 61, 62, 63, 64, 65
sMX, sMWQ, sMKV, sMW1 = 66, 67, 68, 69
sHI = 70
sONE = 72
sT0, sT1, sT2, sT3, sT4, sT5 = 74, 75, 76, 77, 78, 79
sKVT, sKVN = 80, 81
sHO0, sHO1 = 82, 83
sWRO, sWRM = 84, 85
sRLS, sRLD = 86, 87
sSPIN, sSLOW = 88, 89
sM0, sM1 = 90, 92
sTS = 94
sX0, sWQ0, sKV0, sW10 = 96, 97, 98, 99
vLANE, vXD, vWQD, vL16, vW1D = 1, 2, 3, 6, 7
vXR, vWQR, vKVR, vW1R, vGR, vGD = 10, 18, 20, 22, 28, 29
vT0, vT1 = 30, 31
vQA, vQB, vTH = 32, 48, 64
vS = 32
vO = 96
vF = 160
vQ = 208
vWF = 232
vRL, vRLA = 64, 84
vIDX, vKVV, vKVK8 = 2, 3, 4
vPOLL = 5
vP2R, vG0, vG1, vOUTA, vXW, vXRD = 7, 8, 10, 12, 13, 14
vACC, vOF, vW2 = 32, 96, 176
aKV, aX, aH = 0, 64, 64
SPIN_MAX = 1 << 20

C_SCALE = math.log2(math.e) / math.sqrt(20.0)


def f2u(x):
    import struct
    return struct.unpack("<I", struct.pack("<f", x))[0]


def lds_ref(vlo, vhi, off):
    if off < 65536:
        return f"{vr(vlo)} offset:{off}"
    return f"{vr(vhi)} offset:{off-HIB}"


class Gen:
    def __init__(self, **opt):
        self.o = dict(OPT)
        self.o.update(opt)
        self.a = Asm()
        self.segs = {}
        self.nstamp = 0

    def seg(self, name):
        self._cur = (name, len(self.a.lines))

    def endseg(self):
        n, s = self._cur
        self.segs[n] = self.a.lines[s:]

    def stamp(self, idx):
        a = self.a
        if self.o["echo"] and idx in self.o["echo"]:
            a(f"{'s_memtime' if self.o['echo_cyc'] else 's_memrealtime'} {sr(sTS,2)}")
            a("s_waitcnt lgkmcnt(0)")
            a.lg.clear()
            a(f"s_mov_b32 s{100 + self.o['echo'].index(idx)}, {sr(sTS)}")
        if not self.o["stamps"] or idx < 0:
            return
        a(f"s_memtime {sr(sTS,2)}")
        a("s_waitcnt lgkmcnt(0)")
        a.lg.clear()
        a(f"v_writelane_b32 v0, {sr(sTS)}, {idx}")

    def prologue(self):
        a = self.a
        a("s_cmp_ge_u32 s2, 0x100")
        a("s_cbranch_scc1 L_end")
        self.stamp(-1)
        for reg, off in ((sX, 0), (sWQ, 8), (pWK, 16), (pWV, 24), (sG, 64), (sW1, 48), (sWS, 88), (sDBG, 80), (pWO, 32), (pW2, 56), (sOUT, 72)):
            a(f"s_load_dwordx2 {sr(reg,2)}, s[0:1], {off}")
        a(f"v_lshrrev_b32 {vr(vT0)}, 6, v0")
        a(f"v_and_b32 {vr(vLANE)}, 63, v0")
        a(f"v_readfirstlane_b32 {sr(sW)}, {vr(vT0)}")
        a(f"s_and_b32 {sr(sI)}, s2, 31")
        a(f"s_lshr_b32 {sr(sJ)}, s2, 5")
        a(f"s_lshr_b32 {sr(sT0)}, {sr(sI)}, 3")
        a(f"s_mul_i32 {sr(sT0)}, {sr(sT0)}, 3")
        a(f"s_and_b32 {sr(sT1)}, {sr(sI)}, 7")
        a(f"s_add_u32 {sr(sT0)}, {sr(sT0)}, {sr(sT1)}")
        a(f"s_add_u32 {sr(sT0)}, {sr(sT0)}, {sr(sJ)}")
        a(f"s_mul_i32 {sr(sT1)}, {sr(sT0)}, 26")
        a(f"s_lshr_b32 {sr(sT1)}, {sr(sT1)}, 8")
        a(f"s_mul_i32 {sr(sT1)}, {sr(sT1)}, 10")
        a(f"s_sub_u32 {sr(sKL)}, {sr(sT0)}, {sr(sT1)}")
        a(f"s_mov_b32 {sr(sKC)}, {sr(sKL)}")
        a(f"s_and_b32 {sr(sT)}, {sr(sW)}, 1")
        a(f"s_lshr_b32 {sr(sCH)}, {sr(sW)}, 1")
        a(f"v_lshlrev_b32 {vr(vL16)}, 4, {vr(vLANE)}")
        a(f"s_lshl_b32 {sr(sT0)}, {sr(sW)}, 2")
        a(f"v_lshrrev_b32 {vr(vT0)}, 4, {vr(vLANE)}")
        a(f"v_add_u32 {vr(vT0)}, {sr(sT0)}, {vr(vT0)}")
        a(f"v_xor_b32 {vr(vT0)}, {vr(vT0)}, {vr(vLANE)}")
        a(f"v_and_b32 {vr(vT0)}, 7, {vr(vT0)}")
        a(f"v_lshlrev_b32 {vr(vT0)}, 4, {vr(vT0)}")
        a(f"v_lshrrev_b32 {vr(vT1)}, 3, {vr(vLANE)}")
        a(f"s_movk_i32 {sr(sT1)}, 1280")
        a(f"v_mad_u32_u24 {vr(vXD)}, {vr(vT1)}, {sr(sT1)}, {vr(vT0)}")
        for n in range(3):
            a(f"v_add_u32 {vr(vT0)}, {64*n}, {vr(vLANE)}")
            a(f"v_mul_u32_u24 {vr(vT1)}, 0x19a, {vr(vT0)}")
            a(f"v_lshrrev_b32 {vr(vT1)}, 12, {vr(vT1)}")
            a(f"v_mul_u32_u24 {vr(vT1)}, {1280-160}, {vr(vT1)}")
            a(f"v_lshl_add_u32 {vr(vWQD+n)}, {vr(vLANE)}, 4, {vr(vT1)}")
        a(f"s_mul_i32 {sr(sX0)}, {sr(sI)}, {64*1280}")
        a(f"s_mul_i32 {sr(sT0)}, {sr(sW)}, {8*1280}")
        a(f"s_add_u32 {sr(sX0)}, {sr(sX0)}, {sr(sT0)}")
        a(f"s_mul_i32 {sr(sWQ0)}, {sr(sW)}, {16*1280}")
        a(f"s_mul_i32 {sr(sT0)}, {sr(sJ)}, 160")
        a(f"s_add_u32 {sr(sWQ0)}, {sr(sWQ0)}, {sr(sT0)}")
        a(f"s_mul_i32 {sr(sKV0)}, {sr(sW)}, 640")
        a(f"s_lshl_b32 {sr(sMX)}, {sr(sW)}, 10")
        a(f"s_mul_i32 {sr(sMWQ)}, {sr(sW)}, 2560")
        a(f"s_add_u32 {sr(sMWQ)}, {sr(sMWQ)}, 8192")
        a(f"s_add_u32 {sr(sMKV)}, {sr(sKV0)}, 18432")
        a(f"s_mul_i32 {sr(sMW1)}, {sr(sW)}, 6144")
        a("s_waitcnt lgkmcnt(0)")
        for s, n in ((sX, 2048*1280), (sWQ, 640*1280), (sG, 1280)):
            a(f"s_mov_b32 {sr(s+2)}, {n}")
            a(f"s_mov_b32 {sr(s+3)}, 0x20000")
        a(f"s_bitcmp1_b32 {sr(sJ)}, 0")
        a(f"s_cselect_b32 {sr(sKV)}, {sr(pWV)}, {sr(pWK)}")
        a(f"s_cselect_b32 {sr(sKV+1)}, {sr(pWV+1)}, {sr(pWK+1)}")
        a(f"s_cmp_lt_u32 {sr(sJ)}, 4")
        a(f"s_cselect_b32 {sr(sKV+2)}, {640*40}, 0")
        a(f"s_mov_b32 {sr(sKV+3)}, 0x20000")
        a(f"s_mul_i32 {sr(sT0)}, {sr(sW)}, 320")
        a(f"s_add_u32 m0, {sr(sT0)}, {GIMG}")
        a("s_mov_b64 exec, 0xfffff")
        a.vmem(f"buffer_load_dwordx4 {vr(vL16)}, {sr(sG,4)}, {sr(sT0)} offen lds", "G")
        a("s_mov_b64 exec, -1")
        for L in range(4):
            for grp in self.load_stage(L):
                grp()
        for s, n in ((sW1, 640*3072), (sWS, WS_SIZE), (sDBG, 256), (sOUT, 2048*1280)):
            a(f"s_mov_b32 {sr(s+2)}, {n}")
            a(f"s_mov_b32 {sr(s+3)}, 0x20000")
        a(f"s_mov_b32 {sr(sHI)}, 0")
        a(f"s_mov_b32 {sr(sHI+1)}, -1")
        a(f"s_mov_b32 {sr(sONE)}, 0x100000")
        a(f"s_mov_b32 {sr(sONE+1)}, 0x100000")
        a(f"s_mov_b32 {sr(sSLOW)}, 0")
        a(f"s_lshr_b32 {sr(sT0)}, {sr(sJ)}, 1")
        a(f"s_add_u32 {sr(sT0)}, {sr(sT0)}, 2")
        a(f"s_and_b32 {sr(sT1)}, {sr(sJ)}, 1")
        a(f"s_add_u32 {sr(sT1)}, {sr(sT1)}, 1")
        a(f"s_cmp_eq_u32 {sr(sT0)}, {sr(sW)}")
        a(f"s_cselect_b32 {sr(sROLE)}, {sr(sT1)}, 0")
        a(f"s_movk_i32 {sr(sT1)}, 3072")
        for n in range(3):
            a(f"v_add_u32 {vr(vT0)}, {64*n}, {vr(vLANE)}")
            a(f"v_mul_u32_u24 {vr(vT1)}, 0xab, {vr(vT0)}")
            a(f"v_lshrrev_b32 {vr(vT1)}, 12, {vr(vT1)}")
            a(f"v_mul_u32_u24 {vr(vXR)}, 24, {vr(vT1)}")
            a(f"v_sub_u32 {vr(vT0)}, {vr(vT0)}, {vr(vXR)}")
            a(f"v_lshlrev_b32 {vr(vXR)}, 1, {vr(vT1)}")
            a(f"v_and_b32 {vr(vXR)}, 4, {vr(vXR)}")
            a(f"v_xor_b32 {vr(vT0)}, {vr(vT0)}, {vr(vXR)}")
            a(f"v_lshlrev_b32 {vr(vT0)}, 4, {vr(vT0)}")
            a(f"v_mad_u32_u24 {vr(vW1D+n)}, {vr(vT1)}, {sr(sT1)}, {vr(vT0)}")
            if n:
                a(f"v_subrev_u32 {vr(vW1D+n)}, {1024*n}, {vr(vW1D+n)}")
        a(f"s_mul_i32 {sr(sW10)}, {sr(sW)}, {16*3072}")
        a(f"s_mul_i32 {sr(sT0)}, {sr(sJ)}, 384")
        a(f"s_add_u32 {sr(sW10)}, {sr(sW10)}, {sr(sT0)}")
        a(f"v_and_b32 {vr(vT0)}, 31, {vr(vLANE)}")
        a(f"s_lshl_b32 {sr(sT0)}, {sr(sT)}, 5")
        a(f"v_add_u32 {vr(vT0)}, {sr(sT0)}, {vr(vT0)}")
        a(f"v_bfe_u32 {vr(vT1)}, {vr(vLANE)}, 1, 3")
        a(f"v_lshrrev_b32 {vr(vGR)}, 5, {vr(vLANE)}")
        a(f"v_xor_b32 {vr(vT1)}, {vr(vT1)}, {vr(vGR)}")
        a(f"v_lshlrev_b32 {vr(vT1)}, 4, {vr(vT1)}")
        a(f"v_lshl_add_u32 {vr(vXR)}, {vr(vT0)}, 7, {vr(vT1)}")
        for s in range(1, 4):
            a(f"v_xor_b32 {vr(vXR+s)}, {32*s}, {vr(vXR)}")
        for s in range(4):
            a(f"v_add_u32 {vr(vXR+4+s)}, {HIB}, {vr(vXR+s)}")
        a(f"v_bfe_u32 {vr(vT0)}, {vr(vLANE)}, 2, 2")
        a(f"v_lshl_add_u32 {vr(vT0)}, {vr(vGR)}, 3, {vr(vT0)}")
        a(f"v_bfe_u32 {vr(vT1)}, {vr(vLANE)}, 4, 1")
        a(f"v_and_b32 {vr(vGD)}, 3, {vr(vLANE)}")
        a(f"v_lshl_add_u32 {vr(vT1)}, {vr(vT1)}, 2, {vr(vGD)}")
        a(f"v_min_u32 {vr(vGD)}, 4, {vr(vT1)}")
        a(f"v_lshlrev_b32 {vr(vGD)}, 3, {vr(vGD)}")
        a(f"v_mul_u32_u24 {vr(vWQR)}, 160, {vr(vT0)}")
        a(f"s_mul_i32 {sr(sT0)}, {sr(sCH)}, 80")
        a(f"v_add3_u32 {vr(vWQR)}, {vr(vWQR)}, {vr(vGD)}, {sr(sT0)}")
        a(f"v_add_u32 {vr(vWQR+1)}, {HIB}, {vr(vWQR)}")
        a(f"v_mad_u32_u24 {vr(vKVR)}, {vr(vT0)}, 40, {vr(vGD)}")
        a(f"v_add_u32 {vr(vKVR+1)}, {HIB}, {vr(vKVR)}")
        a(f"v_mul_u32_u24 {vr(vGD)}, 384, {vr(vT0)}")
        a(f"v_lshl_add_u32 {vr(vGD)}, {vr(vT1)}, 3, {vr(vGD)}")
        a(f"v_bfe_u32 {vr(vT1)}, {vr(vLANE)}, 3, 1")
        a(f"s_mul_i32 {sr(sT0)}, {sr(sCH)}, 3")
        for ct in range(3):
            a(f"s_add_u32 {sr(sT1)}, {sr(sT0)}, {ct}")
            a(f"v_xor_b32 {vr(vT0)}, {sr(sT1)}, {vr(vT1)}")
            a(f"v_lshl_add_u32 {vr(vW1R+ct)}, {vr(vT0)}, 6, {vr(vGD)}")
            a(f"v_add_u32 {vr(vW1R+3+ct)}, {HIB}, {vr(vW1R+ct)}")
        a(f"v_lshlrev_b32 {vr(vGR)}, 4, {vr(vGR)}")
        a(f"v_add_u32 {vr(vGR)}, {GIMG}, {vr(vGR)}")
        for q in range(4):
            for r in range(12):
                a(f"v_mov_b32 {vr(vO+16*q+r)}, 0")
        if self.o["stamps"]:
            a("v_mov_b32 v0, 0")
        self.stamp(0)
        a(f"s_cmp_eq_u32 {sr(sROLE)}, 1")
        a("s_cbranch_scc1 L_qpass_1")
        a(f"s_cmp_eq_u32 {sr(sROLE)}, 2")
        a("s_cbranch_scc1 L_qpass_2")

    def load_stage(self, L):
        a = self.a
        slot = (L % 5) * SLOT
        tag = f"L{L}"
        g = []

        def adv():
            a(f"s_add_u32 {sr(sKL)}, {sr(sKL)}, 1")
            a(f"s_cmp_eq_u32 {sr(sKL)}, 10")
            a(f"s_cselect_b32 {sr(sKL)}, 0, {sr(sKL)}")

        if L < 10:
            def g0():
                a(f"s_lshl_b32 {sr(sXO)}, {sr(sKL)}, 7")
                a(f"s_add_u32 {sr(sXO)}, {sr(sXO)}, {sr(sX0)}")
                a(f"s_add_u32 m0, {sr(sMX)}, {slot}")
                a(f"s_add_u32 {sr(sXO2)}, {sr(sXO)}, {32*1280}")
                a.vmem(f"buffer_load_dwordx4 {vr(vXD)}, {sr(sX,4)}, {sr(sXO)} offen lds", tag)

            def g1():
                a(f"s_add_u32 m0, {sr(sMX)}, {slot+4096}")
                a(f"s_mul_i32 {sr(sWQO)}, {sr(sKL)}, {64*1280}")
                a.vmem(f"buffer_load_dwordx4 {vr(vXD)}, {sr(sX,4)}, {sr(sXO2)} offen lds", tag)

            def g2():
                a(f"s_add_u32 m0, {sr(sMWQ)}, {slot}")
                a(f"s_add_u32 {sr(sWQO)}, {sr(sWQO)}, {sr(sWQ0)}")
                a.vmem(f"buffer_load_dwordx4 {vr(vWQD)}, {sr(sWQ,4)}, {sr(sWQO)} offen lds", tag)

            def g3():
                a(f"s_mul_i32 {sr(sKVO)}, {sr(sKL)}, 2560")
                a(f"s_add_u32 {sr(sKVO)}, {sr(sKVO)}, {sr(sKV0)}")
                a.vmem(f"buffer_load_dwordx4 {vr(vWQD+1)}, {sr(sWQ,4)}, {sr(sWQO)} offen offset:1024 lds", tag)

            def g4():
                a("s_mov_b32 exec_hi, 0")
                a.vmem(f"buffer_load_dwordx4 {vr(vWQD+2)}, {sr(sWQ,4)}, {sr(sWQO)} offen offset:2048 lds", tag)
                a(f"s_add_u32 m0, {sr(sMKV)}, {slot}")
                a("s_mov_b32 exec_hi, 0xff")
                a.vmem(f"buffer_load_dwordx4 {vr(vL16)}, {sr(sKV,4)}, {sr(sKVO)} offen lds", tag)
                a("s_mov_b32 exec_hi, -1")
                adv()
            g = [g0, g1, g2, g3, g4]
        else:
            def mk(n):
                def f():
                    if n == 0:
                        a(f"s_mul_i32 {sr(sW1O)}, {sr(sKL)}, {64*3072}")
                        a(f"s_add_u32 {sr(sW1O)}, {sr(sW1O)}, {sr(sW10)}")
                        a(f"s_add_u32 m0, {sr(sMW1)}, {slot}")
                        a(f"s_add_u32 {sr(sW1O2)}, {sr(sW1O)}, {8*3072}")
                    if n == 3:
                        a(f"s_add_u32 m0, {sr(sMW1)}, {slot+3072}")
                        adv()
                    off = f" offset:{1024*(n%3)}" if n % 3 else ""
                    a.vmem(f"buffer_load_dwordx4 {vr(vW1D+n%3)}, {sr(sW1,4)}, {sr(sW1O if n < 3 else sW1O2)} offen{off} lds", tag)
                return f
            g = [mk(n) for n in range(6)]
        return g

    def frag_reads(self, U, role):
        a = self.a
        n, s = U // 4, U % 4
        slot = (n % 5) * SLOT
        wf = vWF + 12 * (U % 2)
        tag = f"F{U}"
        if U < 40:
            a.ds(f"ds_read_b128 {ar(aX+4*U,4)}, " + lds_ref(vXR+s, vXR+4+s, slot), tag)
            for hd in range(2):
                for e in range(2):
                    a.ds(f"ds_read_b64_tr_b16 {vr(wf+4*hd+2*e,2)}, " + lds_ref(vWQR, vWQR+1, slot + 8192 + (16*s+4*e)*160 + 40*hd), tag)
            if role == 0:
                if s == 0:
                    a(f"s_lshl_b32 {sr(sT0)}, {sr(sKC)}, 7")
                    a(f"v_add_u32 {vr(vGD)}, {sr(sT0)}, {vr(vGR)}")
                    a(f"s_add_u32 {sr(sKC)}, {sr(sKC)}, 1")
                    a(f"s_cmp_eq_u32 {sr(sKC)}, 10")
                    a(f"s_cselect_b32 {sr(sKC)}, 0, {sr(sKC)}")
                a.ds(f"ds_read_b128 {vr(wf+8,4)}, {vr(vGD)} offset:{32*s}", tag)
            else:
                for e in range(2):
                    a.ds(f"ds_read_b64_tr_b16 {vr(wf+8+2*e,2)}, " + lds_ref(vKVR, vKVR+1, slot + 18432 + (16*s+4*e)*40), tag)
        else:
            for ct in range(3):
                for e in range(2):
                    a.ds(f"ds_read_b64_tr_b16 {vr(wf+4*ct+2*e,2)}, " + lds_ref(vW1R+ct, vW1R+3+ct, slot + (16*s+4*e)*384), tag)

    def p1_step(self, U, role, fill, after_barrier=None):
        a = self.a
        n, s = U // 4, U % 4
        if s == 3 and n < 19:
            a.wait(vm=f"L{n+1}")
            a("s_barrier")
            if after_barrier:
                after_barrier()
            if n + 4 <= 19:
                fill += self.load_stage(n + 4)
        if U + 1 < 80:
            self.frag_reads(U + 1, role)
        a.wait(lg=f"F{U}")
        wf = vWF + 12 * (U % 2)
        x = ar(aX + 4 * (U % 40), 4)
        for c in range(3):
            acc = (vQA + 16 * c) if U < 40 else (vF + 16 * c)
            cin = "0" if U % 40 == 0 else vr(acc, 16)
            if U < 40 and c == 2 and role == 2:
                a(f"v_mfma_f32_32x32x16_bf16 {vr(acc,16)}, {x}, {vr(wf+4*c,4)}, {cin}")
            else:
                a(f"v_mfma_f32_32x32x16_bf16 {vr(acc,16)}, {vr(wf+4*c,4)}, {x}, {cin}")
            if fill and (c < 2 or len(fill) > 2 * (3 - s)):
                fill.pop(0)()

    def qpass(self, role):
        a = self.a
        a.label(f"L_qpass_{role}")
        a.wait(vm="L0")
        a("s_barrier")
        self.frag_reads(0, role)
        fill = []
        for U in range(40):
            self.p1_step(U, role, fill)
        while fill:
            fill.pop(0)()
        self.stamp(1)
        a("s_nop 7")
        a(f"s_mul_i32 {sr(sT0)}, {sr(sW)}, 3072")
        a(f"s_add_u32 {sr(sT0)}, {sr(sT0)}, {XCH}")
        a(f"v_add_u32 {vr(vT0)}, {sr(sT0)}, {vr(vL16)}")
        for hd in range(2):
            acc = vQA + 16 * hd
            for p in range(6):
                a(f"v_cvt_pk_bf16_f32 {vr(vQ+6*hd+p)}, {vr(acc+2*p)}, {vr(acc+2*p+1)}")
            for p in (4, 5):
                a(f"v_cndmask_b32_e64 {vr(vQ+6*hd+p)}, {vr(vQ+6*hd+p)}, 0, {sr(sHI,2)}")
        for n in range(3):
            a.ds(f"ds_write_b128 {vr(vT0)}, {vr(vQ+4*n,4)} offset:{1024*n}", "QW")
        th = vTH
        if role == 0:
            a(f"v_mul_f32 {vr(th)}, {hex(f2u(-math.log2(math.e)))}, {vr(th)}")
            a(f"v_exp_f32 {vr(th)}, {vr(th)}")
            a(f"v_and_b32 {vr(vT1)}, 31, {vr(vLANE)}")
            a(f"v_add_f32 {vr(th)}, 1.0, {vr(th)}")
            a(f"v_rcp_f32 {vr(th)}, {vr(th)}")
            a(f"s_lshl_b32 {sr(sT0)}, {sr(sT)}, 7")
            a(f"s_add_u32 {sr(sT0)}, {sr(sT0)}, {GARR}")
            a(f"v_lshl_add_u32 {vr(vT1)}, {vr(vT1)}, 2, {sr(sT0)}")
            a.ds(f"ds_write_b32 {vr(vT1)}, {vr(th)}", "QW")
        else:
            a(f"s_lshl_b32 {sr(sT0)}, {sr(sI)}, 1")
            a(f"s_add_u32 {sr(sT0)}, {sr(sT0)}, {sr(sT)}")
            a(f"s_lshl_b32 {sr(sT0)}, {sr(sT0)}, 12")
            if role == 1:
                a(f"s_mov_b32 {sr(sT1)}, {hex(f2u(C_SCALE))}")
                for r in range(12):
                    a(f"v_mul_f32 {vr(th+r)}, {sr(sT1)}, {vr(th+r)}")
                for p in range(6):
                    a(f"v_cvt_pk_bf16_f32 {vr(th+p)}, {vr(th+2*p)}, {vr(th+2*p+1)}")
                a(f"v_mov_b32 {vr(th+6)}, 0x3f803f80")
                a(f"v_mov_b32 {vr(th+7)}, 0x3f80")
                a(f"v_cndmask_b32_e64 {vr(th+4)}, {vr(th+4)}, {vr(th+6)}, {sr(sHI,2)}")
                a(f"v_cndmask_b32_e64 {vr(th+5)}, {vr(th+5)}, {vr(th+7)}, {sr(sHI,2)}")
                a(f"v_and_b32 {vr(vT0)}, 0x33, {vr(vLANE)}")
                a(f"v_bfe_u32 {vr(vT1)}, {vr(vLANE)}, 2, 1")
                a(f"v_lshl_or_b32 {vr(vT0)}, {vr(vT1)}, 3, {vr(vT0)}")
                a(f"v_bfe_u32 {vr(vT1)}, {vr(vLANE)}, 3, 1")
                a(f"v_lshl_or_b32 {vr(vT0)}, {vr(vT1)}, 2, {vr(vT0)}")
                a(f"v_lshlrev_b32 {vr(vT1)}, 3, {vr(vT0)}")
                a(f"v_lshlrev_b32 {vr(vT0)}, 4, {vr(vT0)}")
                a(f"buffer_store_dwordx4 {vr(th,4)}, {vr(vT0)}, {sr(sWS,4)}, {sr(sT0)} offen sc1")
                a(f"buffer_store_dwordx2 {vr(th+4,2)}, {vr(vT1)}, {sr(sWS,4)}, {sr(sT0)} offen offset:3072 sc1")
                a(f"s_cmp_lg_u32 {sr(sJ)}, 0")
                a("s_cbranch_scc1 L_noclear")
                a(f"s_lshl_b32 {sr(sT0)}, {sr(sI)}, 7")
                a(f"s_add_u32 {sr(sT0)}, {sr(sT0)}, {WS_F}")
                a(f"v_mov_b32 {vr(th+8)}, 0")
                a(f"v_lshlrev_b32 {vr(vT0)}, 2, {vr(vLANE)}")
                a("s_mov_b64 exec, 0xff")
                a(f"buffer_store_dword {vr(th+8)}, {vr(vT0)}, {sr(sWS,4)}, {sr(sT0)} offen sc1")
                a("s_mov_b64 exec, -1")
                a.label("L_noclear")
            else:
                for p in range(8):
                    a(f"v_cvt_pk_bf16_f32 {vr(th+p)}, {vr(th+2*p)}, {vr(th+2*p+1)}")
                a(f"v_mov_b32 {vr(th+8)}, 0x3f803f80")
                for p in range(8):
                    a(f"v_cndmask_b32_e64 {vr(th+p)}, {vr(th+p)}, {vr(th+8)}, {sr(sONE,2)}")
                a(f"buffer_store_dwordx4 {vr(th,4)}, {vr(vL16)}, {sr(sWS,4)}, {sr(sT0)} offen offset:1024 sc1")
                a(f"buffer_store_dwordx4 {vr(th+4,4)}, {vr(vL16)}, {sr(sWS,4)}, {sr(sT0)} offen offset:2048 sc1")
        a.wait_all(vm=False)
        if role != 2:
            a("s_branch L_ffn1")

    def relayout_setup(self):
        a = self.a
        D, P, E, O_, G_ = sT0, sT1, sT2, sT3, sT4
        a(f"s_lshl_b32 {sr(D)}, s2, 1")
        a(f"s_add_u32 {sr(D)}, {sr(D)}, {sr(sW)}")
        a(f"s_add_u32 {sr(P)}, s2, 512")
        a(f"s_cmp_lt_u32 {sr(sW)}, 2")
        a(f"s_cselect_b32 {sr(D)}, {sr(D)}, {sr(P)}")
        a(f"s_cmp_eq_u32 {sr(sW)}, 3")
        a(f"s_cselect_b32 {sr(D)}, 1000, {sr(D)}")
        a(f"s_cmp_ge_u32 {sr(D)}, 192")
        a(f"s_cselect_b32 {sr(P)}, {KH - 192*640}, 0")
        a(f"s_mul_i32 {sr(sRLD)}, {sr(D)}, 640")
        a(f"s_add_u32 {sr(sRLD)}, {sr(sRLD)}, {sr(P)}")
        a(f"s_lshl_b32 {sr(sRLS)}, {sr(D)}, 2")
        a(f"s_mov_b32 {sr(sRL)}, {sr(pW2)}")
        a(f"s_mov_b32 {sr(sRL+1)}, {sr(pW2+1)}")
        a(f"s_mov_b32 {sr(sRL+2)}, {1536*1280}")
        a(f"s_mov_b32 {sr(sRL+3)}, 0x20000")
        a(f"s_mov_b32 {sr(sRD)}, {sr(sWS)}")
        a(f"s_mov_b32 {sr(sRD+1)}, {sr(sWS+1)}")
        a(f"s_mov_b32 {sr(sRD+2)}, {WS_SIZE}")
        a(f"s_mov_b32 {sr(sRD+3)}, 0x20000")
        a(f"s_cmp_lt_u32 {sr(D)}, 384")
        a("s_cbranch_scc1 L_rl_done")
        a(f"s_mov_b32 {sr(sRL)}, {sr(pWO)}")
        a(f"s_mov_b32 {sr(sRL+1)}, {sr(pWO+1)}")
        a(f"s_cmp_lt_u32 {sr(D)}, 544")
        a(f"s_cselect_b32 {sr(sRL+2)}, {640*1280}, 0")
        a(f"s_cselect_b32 {sr(sRD+2)}, {WS_SIZE}, 0")
        a(f"s_cselect_b32 {sr(D)}, {sr(D)}, 384")
        a(f"s_sub_u32 {sr(D)}, {sr(D)}, 384")
        a(f"s_cmp_ge_u32 {sr(D)}, 80")
        a(f"s_cselect_b32 {sr(P)}, {KH - 80*640}, 0")
        a(f"s_mul_i32 {sr(sRLD)}, {sr(D)}, 640")
        a(f"s_add_u32 {sr(sRLD)}, {sr(sRLD)}, {sr(P)}")
        a(f"s_add_u32 {sr(sRLD)}, {sr(sRLD)}, {24*5120}")
        a(f"s_bfe_u32 {sr(E)}, {sr(D)}, 0x10001")
        a(f"s_lshr_b32 {sr(O_)}, {sr(D)}, 2")
        a(f"s_lshl_b32 {sr(O_)}, {sr(O_)}, 1")
        a(f"s_and_b32 {sr(G_)}, {sr(D)}, 1")
        a(f"s_add_u32 {sr(O_)}, {sr(O_)}, {sr(G_)}")
        a(f"s_mul_i32 {sr(P)}, {sr(O_)}, 205")
        a(f"s_lshr_b32 {sr(P)}, {sr(P)}, 10")
        a(f"s_mul_i32 {sr(G_)}, {sr(P)}, 5")
        a(f"s_sub_u32 {sr(O_)}, {sr(O_)}, {sr(G_)}")
        a(f"s_mul_i32 {sr(P)}, {sr(P)}, 40")
        a(f"s_lshr_b32 {sr(G_)}, {sr(O_)}, 1")
        a(f"s_mul_i32 {sr(G_)}, {sr(G_)}, 20")
        a(f"s_and_b32 {sr(sT5)}, {sr(O_)}, 1")
        a(f"s_lshl_b32 {sr(sT5)}, {sr(sT5)}, 2")
        a(f"s_add_u32 {sr(G_)}, {sr(G_)}, {sr(sT5)}")
        a(f"s_lshl_b32 {sr(sT5)}, {sr(E)}, 3")
        a(f"s_add_u32 {sr(G_)}, {sr(G_)}, {sr(sT5)}")
        a(f"s_mul_i32 {sr(E)}, {sr(E)}, 20")
        a(f"s_add_u32 {sr(E)}, {sr(E)}, 16")
        a(f"s_cmp_eq_u32 {sr(O_)}, 4")
        a(f"s_cselect_b32 {sr(G_)}, {sr(E)}, {sr(G_)}")
        a(f"s_add_u32 {sr(sRLS)}, {sr(P)}, {sr(G_)}")
        a.label("L_rl_done")
        a(f"s_mul_i32 {sr(sRLS)}, {sr(sRLS)}, 1280")
        a(f"s_add_u32 {sr(sRLD)}, {sr(sRLD)}, {WS_W}")
        a(f"s_mov_b32 {sr(sT0)}, {SL}")

    def relayout_load(self, n):
        a = self.a
        a(f"v_add_u32 {vr(vT0)}, {64*n}, {vr(vLANE)}")
        a(f"v_mul_u32_u24 {vr(vT1)}, 0xcd, {vr(vT0)}")
        a(f"v_lshrrev_b32 {vr(vT1)}, 13, {vr(vT1)}")
        a(f"v_mul_u32_u24 {vr(vRLA+n)}, 40, {vr(vT1)}")
        a(f"v_sub_u32 {vr(vT0)}, {vr(vT0)}, {vr(vRLA+n)}")
        a(f"v_mul_lo_u32 {vr(vRLA+5+n)}, {vr(vT1)}, {sr(sT0)}")
        a(f"v_lshl_add_u32 {vr(vRLA+5+n)}, {vr(vT0)}, 4, {vr(vRLA+5+n)}")
        a(f"v_mul_u32_u24 {vr(vRLA+n)}, 0xcd, {vr(vT0)}")
        a(f"v_lshrrev_b32 {vr(vRLA+n)}, 11, {vr(vRLA+n)}")
        a(f"v_mul_u32_u24 {vr(vRLA+n)}, {1280-160}, {vr(vRLA+n)}")
        a(f"v_lshl_add_u32 {vr(vRLA+n)}, {vr(vT0)}, 4, {vr(vRLA+n)}")
        a(f"v_mul_u32_u24 {vr(vT1)}, 160, {vr(vT1)}")
        a(f"v_add_u32 {vr(vRLA+n)}, {vr(vRLA+n)}, {vr(vT1)}")
        a.vmem(f"buffer_load_dwordx4 {vr(vRL+4*n,4)}, {vr(vRLA+n)}, {sr(sRL,4)}, {sr(sRLS)} offen", "RL")

    def spin(self, label, issue, test):
        a = self.a
        a(f"s_mov_b32 {sr(sSPIN)}, 0")
        a.label(label)
        a.wait_all(lg=False)
        test()
        a(f"s_cbranch_vccz {label}_ok")
        a(f"s_add_u32 {sr(sSPIN)}, {sr(sSPIN)}, 1")
        a(f"s_cmp_ge_u32 {sr(sSPIN)}, {SPIN_MAX}")
        a(f"s_cbranch_scc1 {label}_ok")
        issue()
        a(f"s_branch {label}")
        a.label(label + "_ok")
        a.vm.clear()

    def kv_loads(self, n):
        a = self.a
        b = aKV + 14 * (n % 4)
        tag = f"KV{n}"

        def k16():
            a.vmem(f"buffer_load_dwordx4 {ar(b,4)}, {vr(vL16)}, {sr(sWS,4)}, {sr(sKVT)} offen sc1", tag)

        def k8():
            a.vmem(f"buffer_load_dwordx2 {ar(b+12,2)}, {vr(vKVK8)}, {sr(sWS,4)}, {sr(sKVT)} offen offset:3072 sc1", tag)

        def v0():
            a.vmem(f"buffer_load_dwordx4 {ar(b+4,4)}, {vr(vKVV)}, {sr(sWS,4)}, {sr(sKVT)} offen offset:1024 sc1", tag)

        def v1():
            a.vmem(f"buffer_load_dwordx4 {ar(b+8,4)}, {vr(vKVV)}, {sr(sWS,4)}, {sr(sKVT)} offen offset:2048 sc1", tag)

        def adv():
            a(f"s_add_u32 {sr(sKVT)}, {sr(sKVT)}, 8192")
            a(f"s_and_b32 {sr(sKVT)}, {sr(sKVT)}, 0x3ffff")
        return k16, k8, v0, v1, adv

    def kv_start(self):
        a = self.a
        a(f"s_lshl_b32 {sr(sKVT)}, {sr(sI)}, 1")
        a(f"s_add_u32 {sr(sKVT)}, {sr(sKVT)}, {sr(sCH)}")
        a(f"s_lshl_b32 {sr(sKVT)}, {sr(sKVT)}, 12")

    def ffn1(self):
        a = self.a
        a.label("L_ffn1")
        fill = []

        def q_read():
            a(f"s_xor_b32 {sr(sT0)}, {sr(sW)}, 2")
            a(f"s_mul_i32 {sr(sT0)}, {sr(sT0)}, 3072")
            a(f"s_add_u32 {sr(sT0)}, {sr(sT0)}, {XCH}")
            a(f"v_add_u32 {vr(vT0)}, {sr(sT0)}, {vr(vL16)}")
            for n in range(3):
                a.ds(f"ds_read_b128 {vr(vQ+12+4*n,4)}, {vr(vT0)} offset:{1024*n}", "QR")

        def kv_signal():
            a(f"s_cmp_eq_u32 {sr(sROLE)}, 0")
            a("s_cbranch_scc1 L_nosig")
            a(f"s_lshl_b32 {sr(sT0)}, {sr(sI)}, 1")
            a(f"s_add_u32 {sr(sT0)}, {sr(sT0)}, {sr(sT)}")
            a(f"s_lshl_b32 {sr(sT0)}, {sr(sT0)}, 2")
            a(f"v_mov_b32 {vr(vT0)}, 1")
            a("s_mov_b64 exec, 1")
            a(f"buffer_atomic_add {vr(vT0)}, off, {sr(sDBG,4)}, {sr(sT0)} sc1")
            a("s_mov_b64 exec, -1")
            a.label("L_nosig")

        def poll_issue():
            a.vmem(f"buffer_load_dword {vr(vPOLL)}, {vr(vT1)}, {sr(sDBG,4)}, 0 offen sc1", "POLL")

        for U in range(40, 80):
            n, s = U // 4, U % 4
            ab = {10: q_read, 12: kv_signal}.get(n)
            if U == 64:
                self.relayout_setup()
            if 65 <= U < 70:
                fill.append(lambda k=U-65: self.relayout_load(k))
            if U == 78:
                a(f"v_lshlrev_b32 {vr(vT1)}, 2, {vr(vLANE)}")
                poll_issue()
            self.p1_step(U, 0, fill, ab)
        while fill:
            fill.pop(0)()
        self.stamp(2)
        a(f"v_mov_b32 {vr(vIDX)}, 0xdddd")
        a(f"v_lshlrev_b32 {vr(vKVK8)}, 3, {vr(vLANE)}")
        a(f"v_and_b32 {vr(vKVV)}, 31, {vr(vLANE)}")
        a(f"v_min_u32 {vr(vKVV)}, 20, {vr(vKVV)}")
        a(f"v_and_or_b32 {vr(vKVV)}, {vr(vLANE)}, 32, {vr(vKVV)}")
        a(f"v_lshlrev_b32 {vr(vKVV)}, 4, {vr(vKVV)}")
        self.kv_start()

        def test():
            a(f"v_and_b32 {vr(vPOLL)}, 0xff, {vr(vPOLL)}")
            a(f"v_cmp_gt_u32 vcc, 2, {vr(vPOLL)}")
            a("s_nop 4")
        self.spin("L_kvpoll", poll_issue, test)
        self.stamp(3)
        for n in range(3):
            for f in self.kv_loads(n):
                f()
        a(f"s_mul_i32 {sr(sT0)}, {sr(sI)}, 196608")
        a(f"s_mul_i32 {sr(sT1)}, {sr(sT)}, {2*49152}")
        a(f"s_add_u32 {sr(sT0)}, {sr(sT0)}, {sr(sT1)}")
        a(f"s_mul_i32 {sr(sT1)}, {sr(sJ)}, 6144")
        a(f"s_add_u32 {sr(sT0)}, {sr(sT0)}, {sr(sT1)}")
        a(f"s_mul_i32 {sr(sT1)}, {sr(sCH)}, 3072")
        a(f"s_add_u32 {sr(sT0)}, {sr(sT0)}, {sr(sT1)}")
        a(f"s_add_u32 {sr(sT0)}, {sr(sT0)}, {WS_H}")
        a(f"v_bfe_u32 {vr(vT0)}, {vr(vLANE)}, 4, 1")
        a(f"v_mul_u32_u24 {vr(vT0)}, 49152, {vr(vT0)}")
        a(f"v_lshrrev_b32 {vr(vT1)}, 5, {vr(vLANE)}")
        a(f"v_lshl_add_u32 {vr(vT0)}, {vr(vT1)}, 8, {vr(vT0)}")
        a(f"v_and_b32 {vr(vT1)}, 15, {vr(vLANE)}")
        a(f"v_lshl_add_u32 {vr(vT0)}, {vr(vT1)}, 4, {vr(vT0)}")
        for ct in range(3):
            for c in range(2):
                b = vF + 16 * ct + 8 * c
                for p in range(4):
                    a(f"v_cvt_pk_bf16_f32 {vr(b+p)}, {vr(b+2*p)}, {vr(b+2*p+1)}")
                for p in range(4):
                    a(f"v_pk_max_i16 {vr(b+p)}, {vr(b+p)}, 0 op_sel_hi:[1,0]")
                a.vmem(f"buffer_store_dwordx4 {vr(b,4)}, {vr(vT0)}, {sr(sWS,4)}, {sr(sT0)} offen offset:{1024*ct+512*c} sc1", "PUB")
        for n in range(5):
            a.vmem(f"buffer_store_dwordx4 {vr(vRL+4*n,4)}, {vr(vRLA+5+n)}, {sr(sRD,4)}, {sr(sRLD)} offen sc1", "PUB")
        a(f"s_mul_i32 {sr(sHO0)}, {sr(sI)}, 196608")
        a(f"s_mul_i32 {sr(sT1)}, {sr(sCH)}, {24*1024}")
        a(f"s_add_u32 {sr(sHO0)}, {sr(sHO0)}, {sr(sT1)}")
        a(f"s_add_u32 {sr(sHO0)}, {sr(sHO0)}, {WS_H}")
        a(f"s_lshl_b32 {sr(sT0)}, {sr(sT)}, 1")
        a(f"s_add_u32 {sr(sT0)}, {sr(sT0)}, {sr(sCH)}")
        a(f"s_xor_b32 {sr(sT1)}, {sr(sT0)}, 1")
        a(f"s_mul_i32 {sr(sT0)}, {sr(sT0)}, 49152")
        a(f"s_mul_i32 {sr(sT1)}, {sr(sT1)}, 49152")
        a(f"s_add_u32 {sr(sHO1)}, {sr(sHO0)}, {sr(sT1)}")
        a(f"s_add_u32 {sr(sHO0)}, {sr(sHO0)}, {sr(sT0)}")
        a(f"s_mul_i32 {sr(sWRO)}, {sr(sJ)}, {SL}")
        a(f"s_mul_i32 {sr(sT0)}, {sr(sCH)}, {KH}")
        a(f"s_add_u32 {sr(sWRO)}, {sr(sWRO)}, {sr(sT0)}")
        a(f"s_mul_i32 {sr(sT0)}, {sr(sT)}, 5120")
        a(f"s_add_u32 {sr(sWRO)}, {sr(sWRO)}, {sr(sT0)}")
        a(f"s_add_u32 {sr(sWRO)}, {sr(sWRO)}, {WS_W}")
        a(f"s_mul_i32 {sr(sWRM)}, {sr(sCH)}, {REGION}")
        a(f"s_add_u32 {sr(sWRM)}, {sr(sWRM)}, {sr(sT0)}")

    def qk(self, tau):
        n, q = tau // 4, tau % 4
        b = aKV + 14 * (n % 4)
        S = vr(vS + 16 * q, 16)
        return (f"v_mfma_f32_32x32x8_bf16 {S}, {ar(b+12,2)}, {vr(vQ+6*q+4,2)}, 0",
                f"v_mfma_f32_32x32x16_bf16 {S}, {ar(b,4)}, {vr(vQ+6*q,4)}, {S}")

    def pv(self, tau, f):
        n, q = tau // 4, tau % 4
        b = aKV + 14 * (n % 4)
        return f"v_smfmac_f32_32x32x32_bf16 {vr(vO+16*q,16)}, {ar(b+4+4*f,4)}, {vr(vS+16*q+8*f,8)}, {vr(vIDX)}"

    def wr_dma(self, rnd):
        a = self.a
        slot = (rnd % 6) * 10240
        tag = f"WR{rnd}"

        def mk(n):
            def f():
                if n == 0:
                    a(f"s_add_u32 m0, {sr(sWRM)}, {slot}")
                    a(f"s_add_u32 {sr(sT5)}, {sr(sWRO)}, 4096")
                if n == 4:
                    a(f"s_add_u32 m0, {sr(sWRM)}, {slot+4096}")
                    a(f"s_add_u32 {sr(sWRO)}, {sr(sWRO)}, 10240")
                    a.vmem(f"buffer_load_dwordx4 {vr(vL16)}, {sr(sWS,4)}, {sr(sT5)} offen sc1 lds", tag)
                else:
                    off = f" offset:{1024*n}" if n else ""
                    a.vmem(f"buffer_load_dwordx4 {vr(vL16)}, {sr(sWS,4)}, {sr(sWRO)} offen{off} sc1 lds", tag)
            return f
        return [mk(n) for n in range(5)]

    def h_load(self, k):
        a = self.a
        ks, rr = k // 2, k % 2
        so = sHO1 if rr else sHO0

        def f():
            off = f" offset:{1024*(ks%4)}" if ks % 4 else ""
            a.vmem(f"buffer_load_dwordx4 {ar(aH+4*k,4)}, {vr(vL16)}, {sr(sWS,4)}, {sr(so)} offen{off} sc1", f"H{ks}")
            if ks % 4 == 3:
                a(f"s_add_u32 {sr(so)}, {sr(so)}, 4096")
        return f

    def attention(self):
        a = self.a
        o = self.o
        a.wait(vm="KV0", lg="QR")
        for tau in range(2):
            m8, m16 = self.qk(tau)
            a(m8)
            a(m16)
        a("s_nop 8")
        self.stamp(4)
        extra = []
        ex = lambda tau, e: a(f"v_exp_f32 {vr(vS+16*(tau%4)+e)}, {vr(vS+16*(tau%4)+e)}")

        def bpoll_issue():
            a.vmem(f"buffer_load_dword {vr(vPOLL)}, {vr(vT1)}, {sr(sDBG,4)}, 0 offen sc1", "POLL")

        a(f"v_lshlrev_b32 {vr(vT1)}, 2, {vr(vLANE)}")
        for n in range(32):
            if n == o["h_start"]:
                def test():
                    a(f"v_cmp_gt_u32 vcc, 0x400, {vr(vPOLL)}")
                    a("s_nop 4")
                a.wait(vm="POLL")
                snap = a.snapshot()
                test()
                a("s_cbranch_vccz L_bpoll_done")
                bpoll_issue()
                self.spin("L_bpoll", bpoll_issue, test)
                a.label("L_bpoll_done")
                a.restore(snap)
                hl = [self.h_load(k) for k in range(48)]
                wl = sum([self.wr_dma(r) for r in range(6)], [])
                while hl or wl:
                    extra += hl[:3] + wl[:2]
                    hl, wl = hl[3:], wl[2:]
            kvl = list(self.kv_loads(n + 3)) if n + 3 < 32 else [None] * 5
            quota = 5
            for q in range(4):
                tau = 4 * n + q
                sh = {0: [kvl[0], kvl[1]], 1: [kvl[2], kvl[3]], 2: [None, None], 3: [None, None]}[q]

                def take():
                    nonlocal quota
                    if extra and quota:
                        extra.pop(0)()
                        quota -= 1
                ex(tau, 0)
                ex(tau, 1)
                if tau:
                    a(self.pv(tau - 1, 1))
                if sh[0]:
                    sh[0]()
                if q == 2:
                    if n + 1 < 32:
                        a.wait(vm=f"KV{n+1}")
                    if n == o["sig_kt"]:
                        a.wait(vm="PUB")
                        a("s_barrier")
                        a(f"s_cmp_lg_u32 {sr(sW)}, 0")
                        a("s_cbranch_scc1 L_nosigb")
                        a(f"s_lshl_b32 {sr(sT0)}, {sr(sI)}, 1")
                        a(f"s_and_b32 {sr(sT1)}, {sr(sJ)}, 1")
                        a(f"s_add_u32 {sr(sT0)}, {sr(sT0)}, {sr(sT1)}")
                        a(f"s_lshl_b32 {sr(sT0)}, {sr(sT0)}, 2")
                        a(f"v_mov_b32 {vr(vT0)}, 0x100")
                        a("s_mov_b64 exec, 1")
                        a(f"buffer_atomic_add {vr(vT0)}, off, {sr(sDBG,4)}, {sr(sT0)} sc1")
                        a("s_mov_b64 exec, -1")
                        a.label("L_nosigb")
                if q == 3:
                    take()
                for e in (2, 3, 4):
                    ex(tau, e)
                if tau + 2 < 128:
                    m8, m16 = self.qk(tau + 2)
                    a(m8)
                for e in (5, 6, 7, 8):
                    ex(tau, e)
                if tau + 2 < 128:
                    a(m16)
                if q == 1 and kvl[4]:
                    pass
                if q >= 2:
                    take()
                for e in (9, 10, 11, 12):
                    ex(tau, e)
                a(self.pv(tau, 0))
                if sh[1]:
                    sh[1]()
                if q == 1 and kvl[4]:
                    kvl[4]()
                if q >= 2:
                    take()
                if q == 3 and n == o["poll_kt"]:
                    bpoll_issue()
                for e in (13, 14, 15):
                    ex(tau, e)
        assert not extra
        a("s_nop 1")
        a(self.pv(127, 1))
        self.stamp(5)

    def attn_epilogue(self):
        a = self.a
        P = vF
        a(f"s_mul_i32 {sr(sT0)}, {sr(sW)}, 6144")
        a(f"s_add_u32 {sr(sT0)}, {sr(sT0)}, {XCH}")
        a(f"v_add_u32 {vr(vXW)}, {sr(sT0)}, {vr(vL16)}")
        a(f"s_xor_b32 {sr(sT0)}, {sr(sW)}, 2")
        a(f"s_mul_i32 {sr(sT0)}, {sr(sT0)}, 6144")
        a(f"s_add_u32 {sr(sT0)}, {sr(sT0)}, {XCH}")
        a(f"v_add_u32 {vr(vXRD)}, {sr(sT0)}, {vr(vL16)}")
        a(f"s_mov_b32 {sr(sT2)}, {hex(f2u(2.0**-21))}")
        a(f"s_mov_b32 {sr(sT3)}, {hex(f2u(2.0**39))}")
        a(f"s_lshl_b32 {sr(sT0)}, {sr(sW)}, 2")
        a(f"s_add_u32 {sr(sT0)}, {sr(sT0)}, {BADF}")
        a(f"v_mov_b32 {vr(vT0)}, {sr(sT0)}")
        a.label("L_xch")
        a(f"v_min3_f32 {vr(vT1)}, {vr(vO+8)}, {vr(vO+24)}, {vr(vO+40)}")
        a(f"v_max3_f32 {vr(vPOLL)}, {vr(vO+8)}, {vr(vO+24)}, {vr(vO+40)}")
        a(f"v_add_f32 {vr(vG0)}, {vr(vO+8)}, {vr(vO+24)}")
        a(f"v_add_f32 {vr(vG0+1)}, {vr(vO+40)}, {vr(vO+56)}")
        a(f"v_min_f32 {vr(vT1)}, {vr(vT1)}, {vr(vO+56)}")
        a(f"v_max_f32 {vr(vPOLL)}, {vr(vPOLL)}, {vr(vO+56)}")
        a(f"v_cmp_nge_f32_e64 {sr(sM0,2)}, {vr(vT1)}, {sr(sT2)}")
        a(f"v_cmp_nle_f32_e64 {sr(sM1,2)}, {vr(vPOLL)}, {sr(sT3)}")
        a(f"v_cmp_u_f32 vcc, {vr(vG0)}, {vr(vG0+1)}")
        for q in (2, 3):
            for n in range(3):
                a.ds(f"ds_write_b128 {vr(vXW)}, {vr(vO+16*q+4*n,4)} offset:{1024*(3*(q-2)+n)}", "XW")
        a(f"s_or_b64 {sr(sM0,2)}, {sr(sM0,2)}, {sr(sM1,2)}")
        a(f"s_or_b64 {sr(sM0,2)}, {sr(sM0,2)}, vcc")
        if self.o["force_slow"]:
            a(f"s_mov_b32 {sr(sM0+1)}, 1")
        a(f"v_mov_b32 {vr(vT1)}, {sr(sM0+1)}")
        a.ds(f"ds_write_b32 {vr(vT0)}, {vr(vT1)}", "XW")
        a.wait(vm="WR5", lg="XW")
        a("s_barrier")
        a(f"v_mov_b32 {vr(vT1)}, {BADF}")
        a.ds(f"ds_read_b128 {vr(vS,4)}, {vr(vT1)}", "XB")
        for k in range(6):
            a.ds(f"ds_read_b128 {vr(P+4*k,4)}, {vr(vXRD)} offset:{1024*k}", f"XR{k}")
        a(f"v_and_b32 {vr(vT1)}, 31, {vr(vLANE)}")
        a(f"s_lshl_b32 {sr(sT0)}, {sr(sT)}, 7")
        a(f"s_add_u32 {sr(sT0)}, {sr(sT0)}, {GARR}")
        a(f"v_lshl_add_u32 {vr(vT1)}, {vr(vT1)}, 2, {sr(sT0)}")
        a.ds(f"ds_read_b32 {vr(vG0)}, {vr(vT1)}", "XG")
        a.wait(lg="XB")
        a(f"v_or3_b32 {vr(vS)}, {vr(vS)}, {vr(vS+1)}, {vr(vS+2)}")
        a(f"v_or_b32 {vr(vS)}, {vr(vS)}, {vr(vS+3)}")
        a("s_nop 0")
        a(f"v_readfirstlane_b32 {sr(sT0)}, {vr(vS)}")
        a("s_nop 3")
        a(f"s_cmp_eq_u32 {sr(sSLOW)}, 1")
        a(f"s_cselect_b32 {sr(sT0)}, 0, {sr(sT0)}")
        a(f"s_cmp_lg_u32 {sr(sT0)}, 0")
        a("s_cbranch_scc1 L_slow")
        self.xch_snap = a.snapshot()
        a(f"s_mul_i32 {sr(sT0)}, {sr(sI)}, 81920")
        a(f"s_mul_i32 {sr(sT1)}, {sr(sT)}, 40960")
        a(f"s_add_u32 {sr(sT0)}, {sr(sT0)}, {sr(sT1)}")
        a(f"s_mul_i32 {sr(sT1)}, {sr(sJ)}, 2560")
        a(f"s_add_u32 {sr(sT0)}, {sr(sT0)}, {sr(sT1)}")
        a(f"s_mul_i32 {sr(sT1)}, {sr(sCH)}, 1280")
        a(f"s_add_u32 {sr(sT0)}, {sr(sT0)}, {sr(sT1)}")
        a(f"s_add_u32 {sr(sT0)}, {sr(sT0)}, {WS_O}")
        a(f"v_bfe_u32 {vr(vT0)}, {vr(vLANE)}, 4, 1")
        a(f"v_mul_u32_u24 {vr(vT0)}, 20480, {vr(vT0)}")
        a(f"v_lshrrev_b32 {vr(vT1)}, 5, {vr(vLANE)}")
        a(f"v_lshl_add_u32 {vr(vT0)}, {vr(vT1)}, 8, {vr(vT0)}")
        a(f"v_and_b32 {vr(vT1)}, 15, {vr(vLANE)}")
        a(f"v_lshl_add_u32 {vr(vT0)}, {vr(vT1)}, 4, {vr(vT0)}")
        R = vS + 32
        for q in range(2):
            a.wait(lg=f"XR{3*q+2}")
            l0, l1 = vS + 8 + 2 * q, vS + 9 + 2 * q
            a(f"v_add_f32 {vr(l0)}, {vr(vO+16*q+8)}, {vr(P+12*q+8)}")
            a(f"v_add_f32 {vr(l1)}, {vr(vO+16*q+8)}, {vr(P+12*q+8)}")
            for r in range(0, 4, 2):
                a(f"v_pk_add_f32 {vr(vO+16*q+r,2)}, {vr(vO+16*q+r,2)}, {vr(P+12*q+r,2)}")
            a(f"v_permlane32_swap_b32 {vr(l0)}, {vr(l1)}")
            for r in range(4, 12, 2):
                a(f"v_pk_add_f32 {vr(vO+16*q+r,2)}, {vr(vO+16*q+r,2)}, {vr(P+12*q+r,2)}")
            a(f"v_rcp_f32 {vr(l1)}, {vr(l1)}")
            if q == 0:
                a.wait(lg="XG")
            else:
                a("s_nop 0")
            a(f"v_mul_f32 {vr(l0)}, {vr(l1)}, {vr(vG0)}")
            for r in range(0, 12, 2):
                a(f"v_pk_mul_f32 {vr(vO+16*q+r,2)}, {vr(vO+16*q+r,2)}, {vr(l0,2)} op_sel_hi:[1,0]")
            for p in range(6):
                d = R + 4 * q + p if p < 4 else R + 8 + 2 * q + (p - 4)
                a(f"v_cvt_pk_bf16_f32 {vr(d)}, {vr(vO+16*q+2*p)}, {vr(vO+16*q+2*p+1)}")
            a.vmem(f"buffer_store_dwordx4 {vr(R+4*q,4)}, {vr(vT0)}, {sr(sWS,4)}, {sr(sT0)} offen offset:{512*q} sc1", "OPUB")
        a("s_mov_b32 exec_hi, 0")
        a.vmem(f"buffer_store_dwordx4 {vr(R+8,4)}, {vr(vT0)}, {sr(sWS,4)}, {sr(sT0)} offen offset:1024 sc1", "OPUB")
        a("s_mov_b32 exec_hi, -1")
        self.stamp(6)

    def w_reads(self, ks):
        a = self.a
        slot = (ks % 12) * 5120
        wf = vW2 + 20 * (ks % 2)
        for ct in range(5):
            for e in range(2):
                a.ds(f"ds_read_b64_tr_b16 {vr(wf+4*ct+2*e,2)}, {vr(vP2R)} offset:{slot + 1280*e + 8*ct}", f"W{ks}")

    def phase2(self):
        a = self.a
        o = self.o
        a(f"v_lshrrev_b32 {vr(vT0)}, 5, {vr(vLANE)}")
        a(f"v_bfe_u32 {vr(vT1)}, {vr(vLANE)}, 2, 3")
        a(f"v_lshl_add_u32 {vr(vT0)}, {vr(vT0)}, 4, {vr(vT1)}")
        a(f"v_mul_u32_u24 {vr(vT0)}, 160, {vr(vT0)}")
        a(f"v_and_b32 {vr(vT1)}, 3, {vr(vLANE)}")
        a(f"v_mad_u32_u24 {vr(vT0)}, {vr(vT1)}, 40, {vr(vT0)}")
        a(f"s_mul_i32 {sr(sT0)}, {sr(sCH)}, {REGION}")
        a(f"v_add_u32 {vr(vP2R)}, {sr(sT0)}, {vr(vT0)}")
        self.w_reads(0)
        a(f"s_lshl_b32 {sr(sT0)}, {sr(sT)}, 1")
        a(f"s_add_u32 {sr(sT0)}, {sr(sT0)}, {sr(sCH)}")
        a(f"s_lshl_b32 {sr(sT1)}, {sr(sT0)}, 6")
        a(f"s_add_u32 {sr(sT1)}, {sr(sT1)}, {GARR}")
        a(f"v_and_b32 {vr(vT1)}, 15, {vr(vLANE)}")
        a(f"v_lshl_add_u32 {vr(vT0)}, {vr(vT1)}, 2, {sr(sT1)}")
        a.ds(f"ds_read_b32 {vr(vG0)}, {vr(vT0)}", "W0")
        a(f"v_xor_b32 {vr(vT0)}, 64, {vr(vT0)}")
        a.ds(f"ds_read_b32 {vr(vG1)}, {vr(vT0)}", "W0")
        a(f"s_lshl_b32 {sr(sT1)}, {sr(sI)}, 2")
        a(f"s_add_u32 {sr(sT1)}, {sr(sT1)}, {sr(sT0)}")
        a(f"s_mul_i32 {sr(sT1)}, {sr(sT1)}, {16*1280}")
        a(f"s_mul_i32 {sr(sT2)}, {sr(sJ)}, 160")
        a(f"s_add_u32 {sr(sKVN)}, {sr(sT1)}, {sr(sT2)}")
        a(f"v_mul_u32_u24 {vr(vT1)}, 1280, {vr(vT1)}")
        a(f"v_lshrrev_b32 {vr(vT0)}, 4, {vr(vLANE)}")
        a(f"v_mad_u32_u24 {vr(vOUTA)}, {vr(vT0)}, 40, {vr(vT1)}")
        a(f"s_mul_i32 {sr(sHO0)}, {sr(sI)}, 81920")
        a(f"s_mul_i32 {sr(sT1)}, {sr(sCH)}, 10240")
        a(f"s_add_u32 {sr(sHO0)}, {sr(sHO0)}, {sr(sT1)}")
        a(f"s_add_u32 {sr(sHO0)}, {sr(sHO0)}, {WS_O}")
        a(f"s_xor_b32 {sr(sT1)}, {sr(sT0)}, 1")
        a(f"s_mul_i32 {sr(sT0)}, {sr(sT0)}, 20480")
        a(f"s_mul_i32 {sr(sT1)}, {sr(sT1)}, 20480")
        a(f"s_add_u32 {sr(sHO1)}, {sr(sHO0)}, {sr(sT1)}")
        a(f"s_add_u32 {sr(sHO0)}, {sr(sHO0)}, {sr(sT0)}")
        a(f"s_lshl_b32 {sr(sKVT)}, {sr(sI)}, 7")
        a(f"s_add_u32 {sr(sKVT)}, {sr(sKVT)}, {WS_F}")
        a(f"s_lshl_b32 {sr(sT0)}, {sr(sCH)}, 4")
        a(f"s_add_u32 {sr(sRLS)}, {sr(sKVT)}, {sr(sT0)}")
        a(f"s_lshl_b32 {sr(sT0)}, {sr(sJ)}, 2")
        a(f"s_add_u32 {sr(sRLD)}, {sr(sKVT)}, {sr(sT0)}")
        vFL = 72

        def opoll_issue():
            a.vmem(f"buffer_load_dwordx4 {vr(vFL,4)}, off, {sr(sWS,4)}, {sr(sRLS)} sc1", "POLL")

        def otest():
            a(f"v_and_b32 {vr(vFL)}, {vr(vFL)}, {vr(vFL+1)}")
            a(f"v_and_b32 {vr(vFL+2)}, {vr(vFL+2)}, {vr(vFL+3)}")
            a(f"v_and_b32 {vr(vFL)}, {vr(vFL)}, {vr(vFL+2)}")
            a(f"v_cmp_ne_u32 vcc, 1, {vr(vFL)}")
            a("s_nop 4")

        def o_load(k):
            ks, rr = k // 2, k % 2
            so = sHO1 if rr else sHO0

            def f():
                off = f" offset:{1024*(ks%4)}" if ks % 4 else ""
                a.vmem(f"buffer_load_dwordx4 {vr(vOF+4*k,4)}, {vr(vL16)}, {sr(sWS,4)}, {sr(so)} offen{off} sc1", f"O{ks}")
                if ks % 4 == 3:
                    a(f"s_add_u32 {sr(so)}, {sr(so)}, 4096")
            return f

        fill = []
        for ks in range(34):
            r, last = ks // 2, ks % 2 == 1
            if last and r < 16:
                tags = [f"WR{r+1}"] + (["OPUB"] if r == o["oflag_round"] else [])
                a.wait(vm=tags)
                a("s_barrier")
                if r == o["oflag_round"]:
                    a(f"s_cmp_lg_u32 {sr(sW)}, 0")
                    a("s_cbranch_scc1 L_nosigo")
                    a(f"v_mov_b32 {vr(vT0)}, 1")
                    a("s_mov_b64 exec, 1")
                    a(f"buffer_store_dword {vr(vT0)}, off, {sr(sWS,4)}, {sr(sRLD)} sc1")
                    a("s_mov_b64 exec, -1")
                    a.label("L_nosigo")
                if r >= 1 and r + 5 <= 16:
                    fill += self.wr_dma(r + 5)
            if ks == 2 * o["opoll_round"] - 2:
                opoll_issue()
            if ks == 2 * o["opoll_round"]:
                a.wait(vm="POLL")
                snap = a.snapshot()
                otest()
                a("s_cbranch_vccz L_opoll_done")
                opoll_issue()
                self.spin("L_opoll", opoll_issue, otest)
                a.label("L_opoll_done")
                a.restore(snap)
                self.stamp(7)
                fill = [o_load(k) for k in range(20)] + fill
            if ks + 1 < 34:
                self.w_reads(ks + 1)
            a.wait(vm=(f"H{ks}" if ks < 24 else f"O{ks-24}"), lg=f"W{ks}")
            if ks == 0:
                a(f"v_sub_f32 {vr(vG0)}, 1.0, {vr(vG0)}")
                a(f"v_sub_f32 {vr(vG1)}, 1.0, {vr(vG1)}")
            wf = vW2 + 20 * (ks % 2)
            mf = []
            for ct in range(5):
                for rr in range(2):
                    acc = vACC + 20 * rr + 4 * ct
                    b = ar(aH + 4 * (2 * ks + rr), 4) if ks < 24 else vr(vOF + 4 * (2 * (ks - 24) + rr), 4)
                    cin = "0" if ks == 0 else vr(acc, 4)
                    mf.append((acc, rr, f"v_mfma_f32_16x16x32_bf16 {vr(acc,4)}, {vr(wf+4*ct,4)}, {b}, {cin}"))
            if ks == 24:
                self.stamp(8)
                for k in range(11):
                    if k < 10:
                        acc, rr, _ = mf[k]
                        g = vG1 if rr else vG0
                        for h in range(2):
                            a(f"v_pk_mul_f32 {vr(acc+2*h,2)}, {vr(acc+2*h,2)}, {vr(g,2)} op_sel_hi:[1,0]")
                    else:
                        a("s_nop 1")
                    if k:
                        a(mf[k-1][2])
            else:
                for k, (acc, rr, s) in enumerate(mf):
                    a(s)
                    if fill and k % 2 == 1:
                        fill.pop(0)()
        assert not fill
        self.stamp(9)
        a("s_nop 6")
        for ct in range(5):
            a.ds(f"ds_write_b128 {vr(vXW)}, {vr(vACC+20+4*ct,4)} offset:{1024*ct}", "FW")
        a.wait(lg="FW")
        a("s_barrier")
        P = vACC + 20
        for ct in range(5):
            a.ds(f"ds_read_b128 {vr(P+4*ct,4)}, {vr(vXRD)} offset:{1024*ct}", f"FR{ct}")
        R = vACC + 40
        for ct in range(5):
            a.wait(lg=f"FR{ct}")
            for h in range(2):
                a(f"v_pk_add_f32 {vr(vACC+4*ct+2*h,2)}, {vr(vACC+4*ct+2*h,2)}, {vr(P+4*ct+2*h,2)}")
            for h in range(2):
                a(f"v_cvt_pk_bf16_f32 {vr(R+2*ct+h)}, {vr(vACC+4*ct+2*h)}, {vr(vACC+4*ct+2*h+1)}")
            aux = (" " + o["out_aux"]) if o["out_aux"] else ""
            if ct == 1:
                a(f"buffer_store_dwordx4 {vr(R,4)}, {vr(vOUTA)}, {sr(sOUT,4)}, {sr(sKVN)} offen{aux}")
            if ct == 3:
                a(f"buffer_store_dwordx4 {vr(R+4,4)}, {vr(vOUTA)}, {sr(sOUT,4)}, {sr(sKVN)} offen offset:16{aux}")
            if ct == 4:
                a(f"buffer_store_dwordx2 {vr(R+8,2)}, {vr(vOUTA)}, {sr(sOUT,4)}, {sr(sKVN)} offen offset:32{aux}")
        self.stamp(10)
        if o["echo"]:
            a("s_cmp_lg_u32 s2, 37")
            a("s_cbranch_scc1 L_end")
            a("s_sub_u32 s100, s101, s100")
            if o["echo_cyc"]:
                a("s_mul_i32 s100, s100, 2731")
                a("s_lshr_b32 s100, s100, 16")
            a(f"s_memrealtime {sr(sTS,2)}")
            a("s_waitcnt lgkmcnt(0)")
            a(f"s_mov_b32 s101, {sr(sTS)}")
            a.label("L_echo")
            a(f"s_memrealtime {sr(sTS,2)}")
            a("s_waitcnt lgkmcnt(0)")
            a(f"s_sub_u32 {sr(sTS)}, {sr(sTS)}, s101")
            a(f"s_cmp_lt_u32 {sr(sTS)}, s100")
            a("s_cbranch_scc1 L_echo")
        if o["stamps"]:
            a(f"s_memrealtime {sr(sTS,2)}")
            a("s_waitcnt lgkmcnt(0)")
            a(f"v_writelane_b32 v0, {sr(sTS)}, 12")
            a(f"s_lshl_b32 {sr(sT0)}, s2, 2")
            a(f"s_add_u32 {sr(sT0)}, {sr(sT0)}, {sr(sW)}")
            a(f"s_lshl_b32 {sr(sT0)}, {sr(sT0)}, 8")
            a(f"s_add_u32 {sr(sT0)}, {sr(sT0)}, {WS_T}")
            a(f"v_lshlrev_b32 {vr(vT0)}, 2, {vr(vLANE)}")
            a(f"buffer_store_dword v0, {vr(vT0)}, {sr(sWS,4)}, {sr(sT0)} offen")
        a.label("L_end")
        a("s_endpgm")

    def slow(self):
        a = self.a
        a.label("L_slow")
        a.wait_all()
        a("s_barrier")
        a(f"s_mov_b32 {sr(sSLOW)}, 1")
        M = vF
        k16, k8, v0, v1, adv = self.kv_loads(0)
        for q in range(4):
            a(f"v_mov_b32 {vr(M+q)}, 0xff800000")
        self.kv_start()
        a(f"s_mov_b32 {sr(sKVN)}, 32")
        a.label("L_slow_max")
        k16(); k8(); adv()
        a.wait_all()
        for q in range(4):
            for s in self.qk(q):
                a(s)
        a("s_nop 15")
        for q in range(4):
            for r in range(0, 16, 2):
                a(f"v_max3_f32 {vr(M+q)}, {vr(vS+16*q+r)}, {vr(vS+16*q+r+1)}, {vr(M+q)}")
        a(f"s_sub_u32 {sr(sKVN)}, {sr(sKVN)}, 1")
        a(f"s_cmp_lg_u32 {sr(sKVN)}, 0")
        a("s_cbranch_scc1 L_slow_max")
        for q in range(4):
            a(f"v_mov_b32 {vr(M+4+q)}, {vr(M+q)}")
        a("s_nop 1")
        for q in range(4):
            a(f"v_permlane32_swap_b32 {vr(M+q)}, {vr(M+4+q)}")
        for q in range(4):
            a(f"v_max_f32 {vr(M+q)}, {vr(M+q)}, {vr(M+4+q)}")
        a(f"ds_write_b128 {vr(vXW)}, {vr(M,4)}")
        a.wait_all()
        a("s_barrier")
        a(f"ds_read_b128 {vr(M+4,4)}, {vr(vXRD)}")
        a.wait_all()
        for q in range(4):
            a(f"v_max_f32 {vr(M+q)}, {vr(M+q)}, {vr(M+4+(q^2))}")
        for q in range(4):
            m, hi, mid, lo = M + q, M + 8, M + 9, M + 10
            a(f"v_sub_f32 {vr(m)}, 0, {vr(m)}")
            a(f"v_and_b32 {vr(hi)}, 0xffff0000, {vr(m)}")
            a(f"v_sub_f32 {vr(m)}, {vr(m)}, {vr(hi)}")
            a(f"v_and_b32 {vr(mid)}, 0xffff0000, {vr(m)}")
            a(f"v_sub_f32 {vr(m)}, {vr(m)}, {vr(mid)}")
            a(f"v_lshrrev_b32 {vr(lo)}, 16, {vr(m)}")
            a(f"v_lshrrev_b32 {vr(hi)}, 16, {vr(hi)}")
            a(f"v_or_b32 {vr(hi)}, {vr(hi)}, {vr(mid)}")
            a(f"v_cndmask_b32_e64 {vr(vQ+6*q+4)}, {vr(vQ+6*q+4)}, {vr(hi)}, {sr(sHI,2)}")
            a(f"v_cndmask_b32_e64 {vr(vQ+6*q+5)}, {vr(vQ+6*q+5)}, {vr(lo)}, {sr(sHI,2)}")
        for q in range(4):
            for r in range(16):
                a(f"v_mov_b32 {vr(vO+16*q+r)}, 0")
        self.kv_start()
        a(f"s_mov_b32 {sr(sKVN)}, 32")
        a.label("L_slow_pv")
        k16(); k8(); v0(); v1(); adv()
        a.wait_all()
        for q in range(4):
            for s in self.qk(q):
                a(s)
        a("s_nop 15")
        for r in range(64):
            a(f"v_exp_f32 {vr(vS+r)}, {vr(vS+r)}")
        a("s_nop 1")
        for q in range(4):
            for f in range(2):
                a(self.pv(q, f))
        a(f"s_sub_u32 {sr(sKVN)}, {sr(sKVN)}, 1")
        a(f"s_cmp_lg_u32 {sr(sKVN)}, 0")
        a("s_cbranch_scc1 L_slow_pv")
        a("s_nop 15")
        a("s_barrier")
        a(f"s_lshl_b32 {sr(sT0)}, {sr(sW)}, 2")
        a(f"s_add_u32 {sr(sT0)}, {sr(sT0)}, {BADF}")
        a(f"v_mov_b32 {vr(vT0)}, {sr(sT0)}")
        a("s_branch L_xch")

    def build(self):
        a = self.a
        self.seg("pro"); self.prologue(); self.endseg()
        snap = a.snapshot()
        ends = []
        for role in (0, 1, 2):
            a.restore(snap)
            self.seg(f"q{role}"); self.qpass(role); self.endseg()
            ends.append([list(a.vm.q), list(a.lg.q)])
        assert ends[0] == ends[1] == ends[2], ends
        self.seg("main")
        self.ffn1()
        self.attention()
        self.attn_epilogue()
        self.phase2()
        self.endseg()
        self.seg("slow"); self.slow(); self.endseg()
        bad = []
        for role in range(3):
            bad += check_path(self.segs["pro"] + self.segs[f"q{role}"] + self.segs["main"], f"role{role}")
        m = self.segs["main"]
        i0, i1 = m.index("L_xch:"), m.index("s_cbranch_scc1 L_slow")
        bad += check_path(m[:i1 + 1] + self.segs["slow"] + m[i0:], "slow")
        for b in sorted(set(bad)):
            print("HAZARD", b, file=sys.stderr)
        head = open(os.path.join(os.path.dirname(os.path.abspath(__file__)), "..", "cdna_kernels", NAME + ".s.ref")).read()
        head = head[:head.index("; Override launch geometry")]
        txt = head + f"; @launch grid=(256,1,1) block=(256,1,1) lds={LDS_BYTES}\n"
        txt += f""".amdgcn_target "amdgcn-amd-amdhsa--gfx950"
.text
.globl {NAME}_kernel
.p2align 8
.type {NAME}_kernel,@function
{NAME}_kernel:
""" + a.text() + f""".section .rodata,"a"
.p2align 6
.amdhsa_kernel {NAME}_kernel
  .amdhsa_next_free_vgpr 512
  .amdhsa_next_free_sgpr 102
  .amdhsa_accum_offset 256
  .amdhsa_group_segment_fixed_size 0
  .amdhsa_kernarg_size 96
  .amdhsa_user_sgpr_count 2
  .amdhsa_user_sgpr_kernarg_segment_ptr 1
  .amdhsa_system_sgpr_workgroup_id_x 1
.end_amdhsa_kernel
"""
        return txt, bad


if __name__ == "__main__":
    import ast
    out = sys.argv[1]
    opt = {}
    for kv in sys.argv[2:]:
        k, v = kv.split("=", 1)
        try:
            v = ast.literal_eval(v)
        except Exception:
            pass
        opt[k] = v
    txt, bad = Gen(**opt).build()
    open(out, "w").write(txt)
    print("wrote", out, len(txt), "bytes;", len(bad), "hazards")
```

```python
import sys, os, math
sys.path.insert(0, os.path.dirname(os.path.abspath(__file__)))
from asmlib import *

NAME = "gated_mix__grouped_kv_mqa__dense_activation_relu__prompt"
OPT = dict(map='A', rot=(5, 2, 1, 1), rl_kt=(0, 4), p2_rate=3, echo=None, echo_cyc=False, stamps=False, force_slow=False, out_aux="", h_start=13, sig_kt=6, poll_kt=11, oflag_round=3, opoll_ks=(14, 18), kvpoll_u=66, kvtest_u=72)

WS_KV = 0
WS_H = 1 << 20
WS_O = 8 << 20
WS_W = 12 << 20
WS_F = 16 << 20
WS_T = 17 << 20
WS_SIZE = 268435456
SL = 2176 * 160
KH = 34 * 5120
SLOT = 24576
GIMG = 5 * SLOT
GARR = GIMG + 2560
BADF = GARR + 256
XCH = BADF + 256
LDS_BYTES = XCH + 24576
HIB = 57344
REGION = 12 * 5120
sSL = 3
sX, sWQ, sKV, sW1, sWS, sDBG, sOUT, sG, sRL, sRD = 4, 8, 12, 16, 20, 24, 28, 32, 36, 40
sKVS, sHS, sWR, sOS = sX, sWQ, sKV, sG
pX, pWQ, pWK, pWV, pWO, pW1, pW2, pG, pOUT, pDBG, pWS = 44, 46, 48, 50, 52, 56, 58, 60, 62, 64, 66
pKV = 48
sT4, sT5, sZR = 50, 51, 52
sRLS, sRLD = 54, 55
sKVT, sSPIN, sHST, sOST, sFLW, sFLS = 58, 59, 60, 61, 62, 63
sM0, sM1 = 64, 66
sI, sJ, sW, sT, sCH, sROLE, sKL, sMW = 68, 69, 70, 71, 72, 73, 74, 75
sSLOW, sLO, sHIB, sOUTO, sWRM, sTA = 76, 77, 78, 79, 80, 81
sHI = 90
sONE = 92
sTS = 94
sT0, sT1, sT2, sT3 = 96, 97, 98, 99
vLANE, vXD, vWQD, vL16, vXD2, vKVD = 1, 2, 3, 6, 7, 8
vXR, vWQR, vKVR, vW1R, vGR, vGD = 10, 18, 20, 22, 28, 29
vT0, vT1 = 30, 31
vQA, vQB, vTH = 32, 48, 64
vS = 32
vRLS, vRLD = (232, 233, 234, 235, 250), (251, 252, 253, 254, 255)
vO = 96
vWF = 96
vW1D = 132
vF = 160
vQ = 208
vIDX, vKVV, vKVK8, vPOLL = 2, 3, 4, 5
vG0, vG1 = 8, 10
vHST, vOST, vXW, vXRD, vP2R, vOUTA, vGA, vGB, vL4 = 236, 237, 238, 239, 240, 241, 242, 243, 244
vH0, vH1, vO0, vO1, vL16B = 245, 246, 247, 248, 249
vACC, vOF, vW2 = 32, 96, 176
aKV, aX, aH, aRL = 0, 64, 64, 224
OOR = 0x80000000
SPIN_MAX = 1 << 20

C_SCALE = math.log2(math.e) / math.sqrt(20.0)


def f2u(x):
    import struct
    return struct.unpack("<I", struct.pack("<f", x))[0]


def lds_ref(vlo, vhi, off):
    if off < 65536:
        return f"{vr(vlo)} offset:{off}"
    return f"{vr(vhi)} offset:{off-HIB}"


class Gen:
    def __init__(self, **opt):
        self.o = dict(OPT)
        self.o.update(opt)
        self.a = Asm()
        self.segs = {}
        self.nstamp = 0
        self.nfine = 0

    def seg(self, name):
        self._cur = (name, len(self.a.lines))

    def endseg(self):
        n, s = self._cur
        self.segs[n] = self.a.lines[s:]

    def stamp(self, idx):
        a = self.a
        if self.o["echo"] and idx in self.o["echo"]:
            a(f"{'s_memtime' if self.o['echo_cyc'] else 's_memrealtime'} {sr(sTS,2)}")
            a("s_waitcnt lgkmcnt(0)")
            a.lg.clear()
            a(f"s_mov_b32 s{100 + self.o['echo'].index(idx)}, {sr(sTS)}")
        if not self.o["stamps"]:
            return
        if idx < 0:
            a("s_memtime s[100:101]")
            a(f"s_memrealtime {sr(sTS,2)}")
            a("s_waitcnt lgkmcnt(0)")
            a(f"s_mov_b32 s101, {sr(sTS)}")
            return
        a("s_memtime s[100:101]")
        a(f"s_memrealtime {sr(sTS,2)}")
        a("s_waitcnt lgkmcnt(0)")
        a.lg.clear()
        a(f"v_writelane_b32 v0, s100, {idx}")
        a(f"v_writelane_b32 v0, {sr(sTS)}, {16+idx}")

    def fine(self, group, last=False):
        if self.o["stamps"] and self.o.get("fine") == group:
            a = self.a
            if self.nfine:
                a(f"v_writelane_b32 v0, s0, {31 + self.nfine}")
            if not last:
                a("s_memtime s[0:1]")
            self.nfine += 1

    def srd(self, s, p, n):
        a = self.a
        a(f"s_mov_b32 {sr(s)}, {sr(p)}")
        a(f"s_mov_b32 {sr(s+1)}, {sr(p+1)}")
        a(f"s_mov_b32 {sr(s+2)}, {n}")
        a(f"s_mov_b32 {sr(s+3)}, 0x20000")

    def lin(self, dst, terms, const=0):
        a = self.a
        (r0, k0), rest = terms[0], terms[1:]
        a(f"s_mul_i32 {sr(dst)}, {sr(r0)}, {k0}")
        for r, k in rest:
            if k == 1:
                a(f"s_add_u32 {sr(dst)}, {sr(dst)}, {sr(r)}")
            else:
                a(f"s_mul_i32 {sr(sT3)}, {sr(r)}, {k}")
                a(f"s_add_u32 {sr(dst)}, {sr(dst)}, {sr(sT3)}")
        if const:
            a(f"s_add_u32 {sr(dst)}, {sr(dst)}, {const}")

    def prologue(self):
        a = self.a
        a("s_cmp_ge_u32 s2, 0x100")
        a("s_cbranch_scc1 L_end")
        self.stamp(-1)
        a(f"s_load_dwordx8 {sr(pX,8)}, s[0:1], 0")
        a(f"s_load_dwordx8 {sr(pG,8)}, s[0:1], 64")
        a(f"s_load_dwordx8 {sr(pWO,8)}, s[0:1], 32")
        a(f"v_lshrrev_b32 {vr(vT0)}, 6, v0")
        a(f"v_and_b32 {vr(vLANE)}, 63, v0")
        a(f"v_readfirstlane_b32 {sr(sW)}, {vr(vT0)}")
        ra, rk, rb, rc = self.o["rot"]
        if self.o["map"] == "A":
            a(f"s_and_b32 {sr(sI)}, s2, 31")
            a(f"s_lshr_b32 {sr(sJ)}, s2, 5")
            a(f"s_lshr_b32 {sr(sT0)}, {sr(sI)}, 3")
            a(f"s_mov_b32 {sr(sT1)}, {sr(sJ)}")
            a(f"s_and_b32 {sr(sT2)}, {sr(sI)}, 7")
        else:
            a(f"s_bfe_u32 {sr(sT0)}, s2, 0x30003")
            a(f"s_and_b32 {sr(sT2)}, s2, 3")
            a(f"s_lshl2_add_u32 {sr(sI)}, {sr(sT0)}, {sr(sT2)}")
            a(f"s_lshr_b32 {sr(sT1)}, s2, 6")
            a(f"s_and_b32 {sr(sJ)}, s2, 4")
            a(f"s_add_u32 {sr(sJ)}, {sr(sJ)}, {sr(sT1)}")
        a(f"s_and_b32 {sr(sT0)}, {sr(sT0)}, {rk-1}")
        self.lin(sT0, [(sT0, ra), (sT1, rb), (sT2, rc)])
        a(f"s_mul_i32 {sr(sT1)}, {sr(sT0)}, 205")
        a(f"s_lshr_b32 {sr(sT1)}, {sr(sT1)}, 11")
        a(f"s_mul_i32 {sr(sT1)}, {sr(sT1)}, 10")
        a(f"s_sub_u32 {sr(sKL)}, {sr(sT0)}, {sr(sT1)}")
        a(f"s_and_b32 {sr(sT)}, {sr(sW)}, 1")
        a(f"s_lshr_b32 {sr(sCH)}, {sr(sW)}, 1")
        a(f"v_lshlrev_b32 {vr(vL16)}, 4, {vr(vLANE)}")
        a(f"s_lshl_b32 {sr(sT0)}, {sr(sW)}, 2")
        a(f"v_lshrrev_b32 {vr(vT0)}, 4, {vr(vLANE)}")
        a(f"v_add_u32 {vr(vT0)}, {sr(sT0)}, {vr(vT0)}")
        a(f"v_xor_b32 {vr(vT0)}, {vr(vT0)}, {vr(vLANE)}")
        a(f"v_and_b32 {vr(vT0)}, 7, {vr(vT0)}")
        self.lin(sT0, [(sI, 64*1280), (sW, 8*1280)])
        a(f"v_lshl_add_u32 {vr(vT0)}, {vr(vT0)}, 4, {sr(sT0)}")
        a(f"v_lshrrev_b32 {vr(vT1)}, 3, {vr(vLANE)}")
        a(f"s_movk_i32 {sr(sT1)}, 1280")
        a(f"v_mad_u32_u24 {vr(vXD)}, {vr(vT1)}, {sr(sT1)}, {vr(vT0)}")
        a(f"v_add_u32 {vr(vXD2)}, {32*1280-1024}, {vr(vXD)}")
        self.lin(sT0, [(sW, 16*1280), (sJ, 160)])
        a(f"v_add_u32 {vr(vKVD)}, {sr(sT0)}, {vr(vL16)}")
        for n in range(3):
            a(f"v_add_u32 {vr(vT0)}, {64*n}, {vr(vLANE)}")
            a(f"v_mul_u32_u24 {vr(vT1)}, 0x19a, {vr(vT0)}")
            a(f"v_lshrrev_b32 {vr(vT1)}, 12, {vr(vT1)}")
            a(f"v_mul_u32_u24 {vr(vT1)}, {1280-160}, {vr(vT1)}")
            a(f"v_add_u32 {vr(vWQD+n)}, {vr(vKVD)}, {vr(vT1)}")
        a(f"v_cmp_gt_u32 vcc, 32, {vr(vLANE)}")
        a(f"v_mov_b32 {vr(vT0)}, {hex(OOR)}")
        a(f"s_mul_i32 {sr(sT0)}, {sr(sW)}, 640")
        a(f"v_cndmask_b32 {vr(vWQD+2)}, {vr(vT0)}, {vr(vWQD+2)}, vcc")
        a(f"v_cmp_gt_u32 vcc, 40, {vr(vLANE)}")
        a(f"v_add_u32 {vr(vKVD)}, {sr(sT0)}, {vr(vL16)}")
        a(f"s_mul_i32 {sr(sMW)}, {sr(sW)}, 6144")
        a(f"v_cndmask_b32 {vr(vKVD)}, {vr(vT0)}, {vr(vKVD)}, vcc")
        for s_, n in ((sX, 2048*1280), (sWQ, 640*1280), (sG, 1280)):
            a(f"s_mov_b32 {sr(s_+2)}, {n}")
            a(f"s_mov_b32 {sr(s_+3)}, 0x20000")
        a(f"s_bitcmp0_b32 {sr(sJ)}, 0")
        a(f"s_cselect_b32 {sr(sKV+2)}, {640*40+2048}, 0")
        a(f"s_mov_b32 {sr(sKV+3)}, 0x20000")
        a(f"s_mul_i32 {sr(sT2)}, {sr(sW)}, 320")
        a(f"s_lshl_b32 {sr(sT1)}, {sr(sKL)}, 7")
        a(f"s_add_u32 {sr(sOUTO)}, {sr(sT1)}, {GIMG}")
        if self.o["stamps"]:
            a("v_mov_b32 v0, 0")
            a("v_writelane_b32 v0, s100, 15")
            a("v_writelane_b32 v0, s101, 31")
        self.fine("pro")
        a("s_waitcnt lgkmcnt(0)")
        self.fine("pro")
        a(f"s_bitcmp1_b32 {sr(sJ)}, 1")
        a(f"s_cselect_b64 {sr(pKV,2)}, {sr(pWV,2)}, {sr(pWK,2)}")
        a(f"s_sub_u32 {sr(pKV)}, {sr(pKV)}, 2048")
        a(f"s_subb_u32 {sr(pKV+1)}, {sr(pKV+1)}, 0")
        a(f"s_mov_b64 {sr(sG,2)}, {sr(pG,2)}")
        self.flush(self.load_stage(0))
        a(f"s_add_u32 m0, {sr(sT2)}, {GIMG}")
        a("s_mov_b64 exec, 0xfffff")
        a.vmem(f"buffer_load_dwordx4 {vr(vL16)}, {sr(sG,4)}, {sr(sT2)} offen lds", "L0")
        a(f"s_add_u32 m0, {sr(sT2)}, {GIMG+1280}")
        a("s_nop 0")
        a.vmem(f"buffer_load_dwordx4 {vr(vL16)}, {sr(sG,4)}, {sr(sT2)} offen lds", "L0")
        a("s_mov_b64 exec, -1")
        self.fine("pro")
        self.flush(self.load_stage(1))
        self.fine("pro")
        if self.o.get("w1_prefetch"):
            self.lin(sT0, [(2, 4*1920), (sW, 1920)])
            a(f"s_add_u32 {sr(sW1)}, {sr(pW1)}, {sr(sT0)}")
            a(f"s_addc_u32 {sr(sW1+1)}, {sr(pW1+1)}, 0")
            for k in range(15):
                a(f"s_load_dword {sr(82+k%8)}, {sr(sW1,2)}, {128*k}")
            a.lg.issue("F0")
        a(f"s_mov_b32 {sr(sW1+2)}, {640*3072}")
        a(f"s_mov_b32 {sr(sW1+3)}, 0x20000")
        self.srd(sWS, pWS, WS_SIZE)
        self.srd(sDBG, pDBG, 256)
        self.srd(sOUT, pOUT, 2048*1280)
        self.relayout_setup()
        a(f"s_mov_b32 {sr(sHI)}, 0")
        a(f"s_mov_b32 {sr(sHI+1)}, -1")
        a(f"s_mov_b32 {sr(sONE)}, 0x100000")
        a(f"s_mov_b32 {sr(sONE+1)}, 0x100000")
        a(f"s_mov_b32 {sr(sZR)}, 0xffe00000")
        a(f"s_mov_b32 {sr(sZR+1)}, 0xffe00000")
        a(f"s_lshr_b32 {sr(sT0)}, {sr(sJ)}, 2")
        a(f"s_add_u32 {sr(sT0)}, {sr(sT0)}, 2")
        a(f"s_bfe_u32 {sr(sT1)}, {sr(sJ)}, 0x10001")
        a(f"s_add_u32 {sr(sT1)}, {sr(sT1)}, 1")
        a(f"s_cmp_eq_u32 {sr(sT0)}, {sr(sW)}")
        a(f"s_cselect_b32 {sr(sROLE)}, {sr(sT1)}, 3")
        a(f"s_bitcmp1_b32 {sr(sJ)}, 0")
        a(f"s_cselect_b32 {sr(sROLE)}, 3, {sr(sROLE)}")
        a(f"s_cmp_eq_u32 {sr(sCH)}, 0")
        a(f"s_cselect_b32 {sr(sROLE)}, 0, {sr(sROLE)}")
        a(f"v_and_b32 {vr(vT0)}, 31, {vr(vLANE)}")
        self.lin(sT0, [(sT, 128)], GARR)
        a(f"v_lshl_add_u32 {vr(vGA)}, {vr(vT0)}, 2, {sr(sT0)}")
        a(f"v_lshrrev_b32 {vr(vT0)}, 3, {vr(vT0)}")
        a(f"v_mul_u32_u24 {vr(vT0)}, 6144, {vr(vT0)}")
        a(f"v_and_b32 {vr(vT1)}, 7, {vr(vLANE)}")
        a(f"v_lshl_add_u32 {vr(vT0)}, {vr(vT1)}, 7, {vr(vT0)}")
        a(f"v_bfe_u32 {vr(vT1)}, {vr(vLANE)}, 1, 3")
        a(f"v_lshrrev_b32 {vr(vGR)}, 5, {vr(vLANE)}")
        a(f"v_xor_b32 {vr(vT1)}, {vr(vT1)}, {vr(vGR)}")
        a(f"v_lshl_add_u32 {vr(vT0)}, {vr(vT1)}, 4, {vr(vT0)}")
        self.lin(sT0, [(sT, 1024)], 3072)
        a(f"v_add_u32 {vr(vXR)}, {sr(sT0)}, {vr(vT0)}")
        for s_ in range(1, 4):
            a(f"v_xor_b32 {vr(vXR+s_)}, {32*s_}, {vr(vXR)}")
        for s_ in range(4):
            a(f"v_add_u32 {vr(vXR+4+s_)}, {HIB}, {vr(vXR+s_)}")
        a(f"v_bfe_u32 {vr(vT0)}, {vr(vLANE)}, 2, 2")
        a(f"v_lshl_add_u32 {vr(vT0)}, {vr(vGR)}, 3, {vr(vT0)}")
        a(f"v_bfe_u32 {vr(vT1)}, {vr(vLANE)}, 4, 1")
        a(f"v_and_b32 {vr(vGD)}, 3, {vr(vLANE)}")
        a(f"v_lshl_add_u32 {vr(vT1)}, {vr(vT1)}, 2, {vr(vGD)}")
        a(f"v_min_u32 {vr(vGD)}, 4, {vr(vT1)}")
        a(f"v_lshlrev_b32 {vr(vGD)}, 3, {vr(vGD)}")
        a(f"v_mul_u32_u24 {vr(vWQR)}, 160, {vr(vT0)}")
        a(f"s_mul_i32 {sr(sT0)}, {sr(sCH)}, 80")
        a(f"v_add3_u32 {vr(vWQR)}, {vr(vWQR)}, {vr(vGD)}, {sr(sT0)}")
        a(f"v_add_u32 {vr(vWQR+1)}, {HIB}, {vr(vWQR)}")
        a(f"v_mad_u32_u24 {vr(vKVR)}, {vr(vT0)}, 40, {vr(vGD)}")
        a(f"v_add_u32 {vr(vKVR+1)}, {HIB}, {vr(vKVR)}")
        a(f"v_mul_u32_u24 {vr(vGD)}, 384, {vr(vT0)}")
        a(f"v_lshl_add_u32 {vr(vGD)}, {vr(vT1)}, 3, {vr(vGD)}")
        a(f"v_bfe_u32 {vr(vT1)}, {vr(vLANE)}, 3, 1")
        a(f"s_mul_i32 {sr(sT0)}, {sr(sCH)}, 3")
        for ct in range(3):
            a(f"s_add_u32 {sr(sT1)}, {sr(sT0)}, {ct}")
            a(f"v_xor_b32 {vr(vT0)}, {sr(sT1)}, {vr(vT1)}")
            a(f"v_lshl_add_u32 {vr(vW1R+ct)}, {vr(vT0)}, 6, {vr(vGD)}")
            a(f"v_add_u32 {vr(vW1R+3+ct)}, {HIB}, {vr(vW1R+ct)}")
        a(f"v_lshl_add_u32 {vr(vGR)}, {vr(vGR)}, 4, {sr(sOUTO)}")
        self.lin(sT0, [(sW, 6144)], XCH)
        a(f"v_add_u32 {vr(vXW)}, {sr(sT0)}, {vr(vL16)}")
        a(f"s_xor_b32 {sr(sT1)}, {sr(sW)}, 2")
        self.lin(sT0, [(sT1, 6144)], XCH)
        a(f"v_add_u32 {vr(vXRD)}, {sr(sT0)}, {vr(vL16)}")
        a(f"s_movk_i32 {sr(sT1)}, 3072")
        self.lin(sT0, [(sW, 16*3072), (sJ, 384)])
        for n in range(3):
            a(f"v_add_u32 {vr(vT0)}, {64*n}, {vr(vLANE)}")
            a(f"v_mul_u32_u24 {vr(vT1)}, 0xab, {vr(vT0)}")
            a(f"v_lshrrev_b32 {vr(vT1)}, 12, {vr(vT1)}")
            a(f"v_mul_u32_u24 {vr(vL4)}, 24, {vr(vT1)}")
            a(f"v_sub_u32 {vr(vT0)}, {vr(vT0)}, {vr(vL4)}")
            a(f"v_lshlrev_b32 {vr(vL4)}, 1, {vr(vT1)}")
            a(f"v_and_b32 {vr(vL4)}, 4, {vr(vL4)}")
            a(f"v_xor_b32 {vr(vT0)}, {vr(vT0)}, {vr(vL4)}")
            a(f"v_lshl_add_u32 {vr(vT0)}, {vr(vT0)}, 4, {sr(sT0)}")
            a(f"v_mad_u32_u24 {vr(vW1D+n)}, {vr(vT1)}, {sr(sT1)}, {vr(vT0)}")
            a(f"v_add_u32 {vr(vW1D+3+n)}, {8*3072 - (3072, 0, 1024)[n]}, {vr(vW1D+n)}")
            if n:
                a(f"v_subrev_u32 {vr(vW1D+n)}, {1024*n}, {vr(vW1D+n)}")
        for n in range(5):
            self.relayout_addr(n)
        self.fine("pro")
        self.stamp(0)
        for role in (1, 2, 3):
            a(f"s_cmp_eq_u32 {sr(sROLE)}, {role}")
            a(f"s_cbranch_scc1 L_qpass_{role}")

    def late_setup(self):
        a = self.a
        keep, a.lines = a.lines, []
        a(f"v_lshlrev_b32 {vr(vL4)}, 2, {vr(vLANE)}")
        mark = len(a.lines)
        a(f"v_mov_b32 {vr(vIDX)}, 0xdddd")
        a(f"v_lshlrev_b32 {vr(vKVK8)}, 3, {vr(vLANE)}")
        a(f"v_and_b32 {vr(vKVV)}, 31, {vr(vLANE)}")
        a(f"v_min_u32 {vr(vKVV)}, 21, {vr(vKVV)}")
        a(f"v_and_or_b32 {vr(vKVV)}, {vr(vLANE)}, 32, {vr(vKVV)}")
        a(f"v_lshlrev_b32 {vr(vKVV)}, 4, {vr(vKVV)}")
        self.lin(sKVT, [(sI, 8192), (sCH, 4096)])
        a(f"v_lshrrev_b32 {vr(vT1)}, 5, {vr(vLANE)}")
        a(f"v_and_b32 {vr(vT0)}, 15, {vr(vLANE)}")
        a(f"v_lshlrev_b32 {vr(vOUTA)}, 4, {vr(vT0)}")
        a(f"v_lshl_add_u32 {vr(vOUTA)}, {vr(vT1)}, 8, {vr(vOUTA)}")
        a(f"v_bfe_u32 {vr(vT1)}, {vr(vLANE)}, 4, 1")
        a(f"v_mul_u32_u24 {vr(vHST)}, 49152, {vr(vT1)}")
        a(f"v_add_u32 {vr(vHST)}, {vr(vHST)}, {vr(vOUTA)}")
        a(f"v_mul_u32_u24 {vr(vOST)}, 20480, {vr(vT1)}")
        a(f"v_add_u32 {vr(vOST)}, {vr(vOST)}, {vr(vOUTA)}")
        self.lin(sHST, [(sI, 196608), (sT, 2*49152), (sJ, 6144), (sCH, 3072)], WS_H)
        self.lin(sOST, [(sI, 81920), (sT, 40960), (sJ, 2560), (sCH, 1280)], WS_O)
        self.lin(sT0, [(sT, 2), (sCH, 1)])
        a(f"s_xor_b32 {sr(sT1)}, {sr(sT0)}, 1")
        for v, s_, k in ((vH0, sT0, 49152), (vH1, sT1, 49152), (vO0, sT0, 20480), (vO1, sT1, 20480)):
            a(f"s_mul_i32 {sr(sT3)}, {sr(s_)}, {k}")
            a(f"v_add_u32 {vr(v)}, {sr(sT3)}, {vr(vL16)}")
        a(f"v_add_u32 {vr(vL16B)}, 4096, {vr(vL16)}")
        self.lin(sOUTO, [(sI, 64*1280), (sT0, 16*1280), (sJ, 160)])
        self.lin(sT1, [(sT0, 64)], GARR)
        a(f"v_lshl_add_u32 {vr(vGB)}, {vr(vT0)}, 2, {sr(sT1)}")
        a(f"v_mul_u32_u24 {vr(vT0)}, 1280, {vr(vT0)}")
        a(f"v_lshrrev_b32 {vr(vT1)}, 4, {vr(vLANE)}")
        a(f"v_mad_u32_u24 {vr(vOUTA)}, {vr(vT1)}, 40, {vr(vT0)}")
        for srd, terms, const in ((sHS, [(sI, 196608), (sCH, 24*1024)], WS_H), (sOS, [(sI, 81920), (sCH, 10240)], WS_O),
                                  (sWR, [(sJ, SL), (sCH, KH), (sT, 5120)], WS_W)):
            self.lin(sT1, terms, const)
            a.lines.append((f"s_add_u32 {sr(srd)}, {sr(sWS)}, {sr(sT1)}", f"s_addc_u32 {sr(srd+1)}, {sr(sWS+1)}, 0"))
            a(f"s_mov_b32 {sr(srd+2)}, 0x100000")
        a.lines.append((f"s_add_u32 {sr(sKVS)}, {sr(sWS)}, {sr(sKVT)}", f"s_addc_u32 {sr(sKVS+1)}, {sr(sWS+1)}, 0"))
        a(f"s_mov_b32 {sr(sKVS+2)}, 4096")
        self.lin(sWRM, [(sCH, REGION), (sT, 5120)])
        self.lin(sFLW, [(sI, 128), (sCH, 16)], WS_F)
        self.lin(sFLS, [(sI, 128), (sJ, 4)], WS_F)
        a(f"v_lshrrev_b32 {vr(vT0)}, 5, {vr(vLANE)}")
        a(f"v_bfe_u32 {vr(vT1)}, {vr(vLANE)}, 2, 3")
        a(f"v_lshl_add_u32 {vr(vT0)}, {vr(vT0)}, 4, {vr(vT1)}")
        a(f"v_mul_u32_u24 {vr(vT0)}, 160, {vr(vT0)}")
        a(f"v_and_b32 {vr(vT1)}, 3, {vr(vLANE)}")
        a(f"v_mad_u32_u24 {vr(vT0)}, {vr(vT1)}, 40, {vr(vT0)}")
        a(f"s_mul_i32 {sr(sT0)}, {sr(sCH)}, {REGION}")
        a(f"v_add_u32 {vr(vP2R)}, {sr(sT0)}, {vr(vT0)}")
        out, a.lines = a.lines, keep
        return out[:mark], out[mark:]

    def emit(self, it):
        if callable(it):
            it()
            return 1
        if isinstance(it, tuple):
            for l in it:
                self.a(l)
            return len(it)
        self.a(it)
        return 1

    def flush(self, q):
        while q:
            self.emit(q.pop(0))

    def pop(self, queues, budget, nmem=99):
        for q in queues:
            while q and budget > 0:
                if callable(q[0]):
                    if nmem == 0:
                        break
                    nmem -= 1
                budget -= self.emit(q.pop(0))

    def dma(self, v, srd, off, tag, aux=""):
        o = f" offset:{off}" if off else ""
        return lambda: self.a.vmem(f"buffer_load_dwordx4 {vr(v)}, {sr(srd,4)}, 0 offen{o}{aux} lds", tag)

    def base(self, srd, ptr, k):
        return [f"s_mul_i32 {sr(sTA)}, {sr(sKL)}, {k}",
                (f"s_add_u32 {sr(srd)}, {sr(ptr)}, {sr(sTA)}", f"s_addc_u32 {sr(srd+1)}, {sr(ptr+1)}, 0")]

    def load_stage(self, L):
        slot = (L % 5) * SLOT
        tag = f"L{L}"
        adv = [f"s_add_u32 {sr(sKL)}, {sr(sKL)}, 1", (f"s_cmp_eq_u32 {sr(sKL)}, 10", f"s_cselect_b32 {sr(sKL)}, 0, {sr(sKL)}")]
        if L < 10:
            return ([f"s_add_u32 m0, {sr(sMW)}, {slot+3072}"] + self.base(sX, pX, 128)
                    + [self.dma(vXD, sX, 0, tag), self.dma(vXD2, sX, 1024, tag)] + self.base(sKV, pKV, 2560) + [self.dma(vKVD, sKV, 2048, tag)]
                    + [f"s_add_u32 m0, {sr(sMW)}, {slot}"] + self.base(sWQ, pWQ, 64*1280)
                    + [self.dma(vWQD+n, sWQ, 1024*n, tag) for n in range(3)] + adv)
        return ([f"s_add_u32 m0, {sr(sMW)}, {slot}"] + self.base(sW1, pW1, 64*3072)
                + [self.dma(vW1D+n, sW1, 1024*n, tag) for n in range(4)]
                + [f"s_add_u32 m0, {sr(sMW)}, {slot+4096}"] + adv[:1] + [self.dma(vW1D+4, sW1, 0, tag), self.dma(vW1D+5, sW1, 1024, tag)] + adv[1:])

    def frag_reads(self, U, c, role):
        a = self.a
        n, s = U // 4, U % 4
        slot = (n % 5) * SLOT
        wf = vWF + 12 * (U % 3) + 4 * c
        tag = f"F{U}"
        if U < 40:
            if c == 0:
                a.ds(f"ds_read_b128 {ar(aX+4*U,4)}, " + lds_ref(vXR+s, vXR+4+s, slot), tag)
            if c < 2:
                for e in range(2):
                    a.ds(f"ds_read_b64_tr_b16 {vr(wf+2*e,2)}, " + lds_ref(vWQR, vWQR+1, slot + 6144*s + 4*e*160 + 40*c), tag)
            elif role == 0:
                a.ds(f"ds_read_b128 {vr(wf,4)}, {vr(vGR)} offset:{32*U}", tag)
            elif role < 3:
                for e in range(2):
                    a.ds(f"ds_read_b64_tr_b16 {vr(wf+2*e,2)}, " + lds_ref(vKVR, vKVR+1, slot + 6144*s + 5120 + 4*e*40), tag)
        else:
            for e in range(2):
                a.ds(f"ds_read_b64_tr_b16 {vr(wf+2*e,2)}, " + lds_ref(vW1R+c, vW1R+3+c, slot + (16*s+4*e)*384), tag)

    def p1_step(self, U, role, fill, small, after_barrier=None):
        a = self.a
        n, s = U // 4, U % 4
        wf = vWF + 12 * (U % 3)
        x = ar(aX + 4 * (U % 40), 4)
        a.wait(lg=f"F{U}")
        for c in range(3):
            if not (U < 40 and c == 2 and role == 3):
                acc = (vQA + 16 * c) if U < 40 else (vF + 16 * c)
                cin = "0" if U % 40 == 0 else vr(acc, 16)
                if U < 40 and c == 2 and role == 2:
                    a(f"v_mfma_f32_32x32x16_bf16 {vr(acc,16)}, {x}, {vr(wf+4*c,4)}, {cin}")
                else:
                    a(f"v_mfma_f32_32x32x16_bf16 {vr(acc,16)}, {vr(wf+4*c,4)}, {x}, {cin}")
            budget = self.o.get("p1_budget", 3) - (c == 2) - (U < 38 and c == 0)
            if c == 0 and s == 2 and n < 19:
                self.flush(fill)
                a.wait(vm=f"L{n+1}")
                a("s_barrier")
                budget -= 2
                self.nfine = n + 1
                self.fine("p1")
                if after_barrier:
                    after_barrier()
                if n + 3 <= 19:
                    fill += self.load_stage(n + 3)
            if U + 2 < 80:
                self.frag_reads(U + 2, c, role)
            self.pop([fill, small], budget, (3 * U + c) % 2 if U >= 3 else 2)

    def qpass(self, role):
        a = self.a
        a.label(f"L_qpass_{role}")
        a.wait(vm="L0")
        a("s_barrier")
        if self.o.get("fine") == "pro":
            self.nfine = 5
            self.fine("pro")
        self.nfine = 0
        self.fine("p1")
        fill = self.load_stage(2)
        for U in range(2):
            for c in range(3):
                self.frag_reads(U, c, role)
        for U in range(40):
            self.p1_step(U, role, fill, [])
        self.left = self.load_stage(12)[-len(fill):] if fill else []
        self.stamp(1)
        a("s_nop 4")
        for hd in range(2):
            acc = vQA + 16 * hd
            q = vQ + 12 + 6 * hd
            for p in range(6):
                a(f"v_cvt_pk_bf16_f32 {vr(q+p)}, {vr(acc+2*p)}, {vr(acc+2*p+1)}")
            for p in (4, 5):
                a(f"v_cndmask_b32_e64 {vr(q+p)}, {vr(q+p)}, 0, {sr(sHI,2)}")
        for n in range(3):
            a.ds(f"ds_write_b128 {vr(vXW)}, {vr(vQ+12+4*n,4)} offset:{1024*n}", "QW")
        th = vTH
        if role == 0:
            a(f"v_mul_f32 {vr(th)}, {hex(f2u(-math.log2(math.e)))}, {vr(th)}")
            a(f"v_exp_f32 {vr(th)}, {vr(th)}")
            a("s_nop 0")
            a(f"v_add_f32 {vr(th)}, 1.0, {vr(th)}")
            a(f"v_rcp_f32 {vr(th)}, {vr(th)}")
            a("s_nop 0")
            a.ds(f"ds_write_b32 {vr(vGA)}, {vr(th)}", "QW")
        elif role < 3:
            self.lin(sT0, [(sI, 8192), (sT, 4096)])
            if role == 1:
                a(f"s_mov_b32 {sr(sT1)}, {hex(f2u(C_SCALE))}")
                for r in range(12):
                    a(f"v_mul_f32 {vr(th+r)}, {sr(sT1)}, {vr(th+r)}")
                for p in range(6):
                    a(f"v_cvt_pk_bf16_f32 {vr(th+p)}, {vr(th+2*p)}, {vr(th+2*p+1)}")
                a(f"v_mov_b32 {vr(th+6)}, 0x3f803f80")
                a(f"v_mov_b32 {vr(th+7)}, 0x3f80")
                a(f"v_cndmask_b32_e64 {vr(th+4)}, {vr(th+4)}, {vr(th+6)}, {sr(sHI,2)}")
                a(f"v_cndmask_b32_e64 {vr(th+5)}, {vr(th+5)}, {vr(th+7)}, {sr(sHI,2)}")
                a(f"v_and_b32 {vr(vT0)}, 0x33, {vr(vLANE)}")
                a(f"v_bfe_u32 {vr(vT1)}, {vr(vLANE)}, 2, 1")
                a(f"v_lshl_or_b32 {vr(vT0)}, {vr(vT1)}, 3, {vr(vT0)}")
                a(f"v_bfe_u32 {vr(vT1)}, {vr(vLANE)}, 3, 1")
                a(f"v_lshl_or_b32 {vr(vT0)}, {vr(vT1)}, 2, {vr(vT0)}")
                a(f"v_lshlrev_b32 {vr(vT1)}, 3, {vr(vT0)}")
                a(f"v_lshlrev_b32 {vr(vT0)}, 4, {vr(vT0)}")
                a(f"buffer_store_dwordx4 {vr(th,4)}, {vr(vT0)}, {sr(sWS,4)}, {sr(sT0)} offen sc1")
                a(f"buffer_store_dwordx2 {vr(th+4,2)}, {vr(vT1)}, {sr(sWS,4)}, {sr(sT0)} offen offset:3072 sc1")
                a(f"s_cmp_lg_u32 {sr(sJ)}, 0")
                a("s_cbranch_scc1 L_noclear")
                self.lin(sT0, [(sI, 128)], WS_F)
                a(f"v_mov_b32 {vr(th+8)}, 0")
                a(f"v_lshlrev_b32 {vr(vT0)}, 2, {vr(vLANE)}")
                a("s_mov_b64 exec, 0xff")
                a(f"buffer_store_dword {vr(th+8)}, {vr(vT0)}, {sr(sWS,4)}, {sr(sT0)} offen sc1")
                a("s_mov_b64 exec, -1")
                a.label("L_noclear")
            else:
                for p in range(8):
                    a(f"v_cvt_pk_bf16_f32 {vr(th+p)}, {vr(th+2*p)}, {vr(th+2*p+1)}")
                a(f"v_mov_b32 {vr(th+8)}, 0x3f803f80")
                for p in range(8):
                    a(f"v_cndmask_b32_e64 {vr(th+p)}, {vr(th+p)}, {vr(th+8)}, {sr(sONE,2)}")
                    a(f"v_cndmask_b32_e64 {vr(th+p)}, {vr(th+p)}, 0, {sr(sZR,2)}")
                a(f"buffer_store_dwordx4 {vr(th,4)}, {vr(vL16)}, {sr(sWS,4)}, {sr(sT0)} offen offset:1024 sc1")
                a(f"buffer_store_dwordx4 {vr(th+4,4)}, {vr(vL16)}, {sr(sWS,4)}, {sr(sT0)} offen offset:2048 sc1")
        a.wait_all(vm=False)
        if role != 3:
            a("s_branch L_ffn1")

    def relayout_setup(self):
        a = self.a
        D, P, E, O_, G_ = sT0, sT1, sT2, sT3, sT4
        a(f"s_lshl_b32 {sr(D)}, s2, 1")
        a(f"s_add_u32 {sr(D)}, {sr(D)}, {sr(sW)}")
        a(f"s_add_u32 {sr(P)}, s2, 512")
        a(f"s_cmp_lt_u32 {sr(sW)}, 2")
        a(f"s_cselect_b32 {sr(D)}, {sr(D)}, {sr(P)}")
        a(f"s_cmp_eq_u32 {sr(sW)}, 3")
        a(f"s_cselect_b32 {sr(D)}, 1000, {sr(D)}")
        a(f"s_cmp_ge_u32 {sr(D)}, 192")
        a(f"s_cselect_b32 {sr(P)}, {KH - 192*640}, 0")
        a(f"s_mul_i32 {sr(sRLD)}, {sr(D)}, 640")
        a(f"s_add_u32 {sr(sRLD)}, {sr(sRLD)}, {sr(P)}")
        a(f"s_lshl_b32 {sr(sRLS)}, {sr(D)}, 2")
        a(f"s_mov_b32 {sr(sRL)}, {sr(pW2)}")
        a(f"s_mov_b32 {sr(sRL+1)}, {sr(pW2+1)}")
        a(f"s_mov_b32 {sr(sRL+2)}, {1536*1280}")
        a(f"s_mov_b32 {sr(sRL+3)}, 0x20000")
        a(f"s_mov_b32 {sr(sRD)}, {sr(pWS)}")
        a(f"s_mov_b32 {sr(sRD+1)}, {sr(pWS+1)}")
        a(f"s_mov_b32 {sr(sRD+2)}, {WS_SIZE}")
        a(f"s_mov_b32 {sr(sRD+3)}, 0x20000")
        a(f"s_cmp_lt_u32 {sr(D)}, 384")
        a("s_cbranch_scc1 L_rl_done")
        a(f"s_mov_b32 {sr(sRL)}, {sr(pWO)}")
        a(f"s_mov_b32 {sr(sRL+1)}, {sr(pWO+1)}")
        a(f"s_cmp_lt_u32 {sr(D)}, 544")
        a(f"s_cselect_b32 {sr(sRL+2)}, {640*1280}, 0")
        a(f"s_cselect_b32 {sr(sRD+2)}, {WS_SIZE}, 0")
        a(f"s_cselect_b32 {sr(D)}, {sr(D)}, 384")
        a(f"s_sub_u32 {sr(D)}, {sr(D)}, 384")
        a(f"s_cmp_ge_u32 {sr(D)}, 80")
        a(f"s_cselect_b32 {sr(P)}, {KH - 80*640}, 0")
        a(f"s_mul_i32 {sr(sRLD)}, {sr(D)}, 640")
        a(f"s_add_u32 {sr(sRLD)}, {sr(sRLD)}, {sr(P)}")
        a(f"s_add_u32 {sr(sRLD)}, {sr(sRLD)}, {24*5120}")
        a(f"s_bfe_u32 {sr(E)}, {sr(D)}, 0x10001")
        a(f"s_lshr_b32 {sr(O_)}, {sr(D)}, 2")
        a(f"s_lshl_b32 {sr(O_)}, {sr(O_)}, 1")
        a(f"s_and_b32 {sr(G_)}, {sr(D)}, 1")
        a(f"s_add_u32 {sr(O_)}, {sr(O_)}, {sr(G_)}")
        a(f"s_mul_i32 {sr(P)}, {sr(O_)}, 205")
        a(f"s_lshr_b32 {sr(P)}, {sr(P)}, 10")
        a(f"s_mul_i32 {sr(G_)}, {sr(P)}, 5")
        a(f"s_sub_u32 {sr(O_)}, {sr(O_)}, {sr(G_)}")
        a(f"s_mul_i32 {sr(P)}, {sr(P)}, 40")
        a(f"s_lshr_b32 {sr(G_)}, {sr(O_)}, 1")
        a(f"s_mul_i32 {sr(G_)}, {sr(G_)}, 20")
        a(f"s_and_b32 {sr(sT5)}, {sr(O_)}, 1")
        a(f"s_lshl_b32 {sr(sT5)}, {sr(sT5)}, 2")
        a(f"s_add_u32 {sr(G_)}, {sr(G_)}, {sr(sT5)}")
        a(f"s_lshl_b32 {sr(sT5)}, {sr(E)}, 3")
        a(f"s_add_u32 {sr(G_)}, {sr(G_)}, {sr(sT5)}")
        a(f"s_mul_i32 {sr(E)}, {sr(E)}, 20")
        a(f"s_add_u32 {sr(E)}, {sr(E)}, 16")
        a(f"s_cmp_eq_u32 {sr(O_)}, 4")
        a(f"s_cselect_b32 {sr(G_)}, {sr(E)}, {sr(G_)}")
        a(f"s_add_u32 {sr(sRLS)}, {sr(P)}, {sr(G_)}")
        a.label("L_rl_done")
        a(f"s_mul_i32 {sr(sRLS)}, {sr(sRLS)}, 1280")
        a(f"s_add_u32 {sr(sRLD)}, {sr(sRLD)}, {WS_W}")
        a(f"s_mov_b32 {sr(sSL)}, {SL}")

    def relayout_addr(self, n):
        a = self.a
        a(f"v_add_u32 {vr(vT0)}, {64*n}, {vr(vLANE)}")
        a(f"v_mul_u32_u24 {vr(vT1)}, 0xcd, {vr(vT0)}")
        a(f"v_lshrrev_b32 {vr(vT1)}, 13, {vr(vT1)}")
        a(f"v_mul_u32_u24 {vr(vRLS[n])}, 40, {vr(vT1)}")
        a(f"v_sub_u32 {vr(vT0)}, {vr(vT0)}, {vr(vRLS[n])}")
        a(f"v_mul_lo_u32 {vr(vRLD[n])}, {vr(vT1)}, {sr(sSL)}")
        a(f"v_lshl_add_u32 {vr(vRLD[n])}, {vr(vT0)}, 4, {vr(vRLD[n])}")
        a(f"v_mul_u32_u24 {vr(vRLS[n])}, 0xcd, {vr(vT0)}")
        a(f"v_lshrrev_b32 {vr(vRLS[n])}, 11, {vr(vRLS[n])}")
        a(f"v_mul_u32_u24 {vr(vRLS[n])}, {1280-160}, {vr(vRLS[n])}")
        a(f"v_lshl_add_u32 {vr(vRLS[n])}, {vr(vT0)}, 4, {vr(vRLS[n])}")
        a(f"v_mul_u32_u24 {vr(vT1)}, 160, {vr(vT1)}")
        a(f"v_add_u32 {vr(vRLS[n])}, {vr(vRLS[n])}, {vr(vT1)}")

    def relayout_load(self, n):
        self.a.vmem(f"buffer_load_dwordx4 {ar(aRL+4*n,4)}, {vr(vRLS[n])}, {sr(sRL,4)}, {sr(sRLS)} offen", "RL")

    def spin(self, label, issue, test):
        a = self.a
        a(f"s_mov_b32 {sr(sSPIN)}, 0")
        a.label(label)
        a.wait_all(lg=False)
        test()
        a(f"s_cbranch_vccz {label}_ok")
        a(f"s_add_u32 {sr(sSPIN)}, {sr(sSPIN)}, 1")
        a(f"s_cmp_ge_u32 {sr(sSPIN)}, {SPIN_MAX}")
        a(f"s_cbranch_scc1 {label}_ok")
        issue()
        a(f"s_branch {label}")
        a.label(label + "_ok")
        a.vm.clear()

    def kv_loads(self, n, step=8192):
        a = self.a
        b = aKV + 14 * (n % 4)
        tag = f"KV{n}"
        ld = lambda w, r, v, off: (lambda: a.vmem(f"buffer_load_dwordx{w} {ar(r,w)}, {vr(v)}, {sr(sKVS,4)}, 0 offen{f' offset:{off}' if off else ''} sc1", tag))
        adv = [f"s_add_u32 {sr(sKVT)}, {sr(sKVT)}, {step}", f"s_and_b32 {sr(sKVT)}, {sr(sKVT)}, 0x3ffff",
               (f"s_add_u32 {sr(sKVS)}, {sr(sWS)}, {sr(sKVT)}", f"s_addc_u32 {sr(sKVS+1)}, {sr(sWS+1)}, 0")]
        return [ld(4, b, vL16, 0), ld(2, b+12, vKVK8, 3072), ld(4, b+4, vKVV, 1024), ld(4, b+8, vKVV, 2048)], adv

    def try_poll(self, label, issue, test):
        a = self.a
        a.wait(vm="POLL")
        snap = a.snapshot()
        test()
        a(f"s_cbranch_vccz {label}_done")
        issue()
        self.spin(label, issue, test)
        a.label(f"{label}_done")
        a.restore(snap)

    def ffn1(self):
        a = self.a
        o = self.o
        a.label("L_ffn1")
        fill = self.left
        early, late = self.late_setup()
        small = early + late

        def q_read():
            for n in range(3):
                a.ds(f"ds_read_b128 {vr(vQ+4*n,4)}, {vr(vXRD)} offset:{1024*n}", "QR")

        def kv_signal():
            a(f"s_add_u32 {sr(sT2)}, {sr(sROLE)}, 1")
            a(f"s_bitcmp0_b32 {sr(sT2)}, 1")
            a("s_cbranch_scc1 L_nosig")
            a(f"s_lshl_b32 {sr(sT2)}, {sr(sI)}, 1")
            a(f"s_add_u32 {sr(sT2)}, {sr(sT2)}, {sr(sT)}")
            a(f"s_lshl_b32 {sr(sT2)}, {sr(sT2)}, 2")
            a(f"v_mov_b32 {vr(vPOLL)}, 1")
            a("s_mov_b64 exec, 1")
            a(f"buffer_atomic_add {vr(vPOLL)}, off, {sr(sDBG,4)}, {sr(sT2)} sc1")
            a("s_mov_b64 exec, -1")
            a.label("L_nosig")

        def poll_issue():
            a.vmem(f"buffer_load_dword {vr(vPOLL)}, {vr(vL4)}, {sr(sDBG,4)}, 0 offen sc1", "POLL")

        def test():
            a(f"v_and_b32 {vr(vPOLL)}, 0xff, {vr(vPOLL)}")
            a(f"v_cmp_gt_u32 vcc, 2, {vr(vPOLL)}")
            a("s_nop 4")

        for U in range(40, 80):
            n, s = U // 4, U % 4
            ab = {10: q_read, 11: kv_signal}.get(n)
            if U == o["kvpoll_u"]:
                fill.append(poll_issue)
            if U == o["kvtest_u"]:
                assert not small and not fill
                self.try_poll("L_kvpoll", poll_issue, test)
                self.stamp(2)
                for k in range(2):
                    ld, adv = self.kv_loads(k)
                    fill += ld + adv
            self.p1_step(U, 0, fill, small, ab)
        self.flush(fill)
        self.nfine = 20
        self.fine("p1", True)
        self.stamp(3)
        a(f"v_mov_b32 {vr(vT0)}, 0")
        a(f"v_mov_b32 {vr(vT1)}, 0")
        a(f"s_mov_b32 {sr(sSLOW)}, 0")
        a(f"s_mov_b32 {sr(sLO)}, {hex(f2u(2.0**-20))}")
        a(f"s_mov_b32 {sr(sHIB)}, {hex(f2u(2.0**40))}")
        a.wait(vm="KV0", lg="QR")
        pre = list(self.qk(0)) + list(self.qk(1))
        pre += [f"v_mfma_f32_32x32x8_bf16 {vr(vO+16*q,16)}, {vr(vT0,2)}, {vr(vT0,2)}, 0" for q in range(4)]
        a(pre.pop(0))
        a(pre.pop(0))
        a("s_nop 5")
        for ct in range(3):
            for c in range(2):
                b = vF + 16 * ct + 8 * c
                for p in range(4):
                    a(f"v_cvt_pk_bf16_f32 {vr(b+p)}, {vr(b+2*p)}, {vr(b+2*p+1)}")
                for p in range(4):
                    a(f"v_pk_max_i16 {vr(b+p)}, {vr(b+p)}, 0 op_sel_hi:[1,0]")
                a(pre.pop(0))
                a.vmem(f"buffer_store_dwordx4 {vr(b,4)}, {vr(vHST)}, {sr(sWS,4)}, {sr(sHST)} offen offset:{1024*ct+512*c} sc1", "PUB")

    def qk(self, tau):
        n, q = tau // 4, tau % 4
        b = aKV + 14 * (n % 4)
        S = vr(vS + 16 * q, 16)
        return (f"v_mfma_f32_32x32x8_bf16 {S}, {ar(b+12,2)}, {vr(vQ+6*q+4,2)}, 0",
                f"v_mfma_f32_32x32x16_bf16 {S}, {ar(b,4)}, {vr(vQ+6*q,4)}, {S}")

    def pv(self, tau, f):
        n, q = tau // 4, tau % 4
        b = aKV + 14 * (n % 4)
        return f"v_smfmac_f32_32x32x32_bf16 {vr(vO+16*q,16)}, {ar(b+4+4*f,4)}, {vr(vS+16*q+8*f,8)}, {vr(vIDX)}"

    def wr_dma(self, rnd):
        slot = (rnd % 6) * 10240
        tag = f"WR{rnd}"
        return ([f"s_add_u32 m0, {sr(sWRM)}, {slot}"] + [self.dma(vL16, sWR, 1024*n, tag, " sc1") for n in range(4)]
                + [f"s_add_u32 m0, {sr(sWRM)}, {slot+4096}", self.dma(vL16B, sWR, 0, tag, " sc1"),
                   (f"s_add_u32 {sr(sWR)}, {sr(sWR)}, 10240", f"s_addc_u32 {sr(sWR+1)}, {sr(sWR+1)}, 0")])

    def frag_load(self, k, dst, srd, v0, v1, tag):
        ks, rr = k // 2, k % 2
        off = f" offset:{1024*(ks%4)}" if ks % 4 else ""
        it = [lambda: self.a.vmem(f"buffer_load_dwordx4 {dst}, {vr(v1 if rr else v0)}, {sr(srd,4)}, 0 offen{off} sc1", f"{tag}{ks}")]
        if k % 8 == 7:
            it.append((f"s_add_u32 {sr(srd)}, {sr(srd)}, 4096", f"s_addc_u32 {sr(srd+1)}, {sr(srd+1)}, 0"))
        return it

    def attention(self):
        a = self.a
        o = self.o
        self.stamp(4)
        extra = []
        ex = lambda tau, e: a(f"v_exp_f32 {vr(vS+16*(tau%4)+e)}, {vr(vS+16*(tau%4)+e)}")
        P = vF

        def bpoll_issue():
            a.vmem(f"buffer_load_dword {vr(vPOLL)}, {vr(vL4)}, {sr(sDBG,4)}, 0 offen sc1", "POLL")

        def btest():
            a(f"v_cmp_gt_u32 vcc, 0x400, {vr(vPOLL)}")
            a("s_nop 4")

        def xw(q, n):
            a.ds(f"ds_write_b128 {vr(vXW)}, {vr(vO+16*q+4*n,4)} offset:{1024*(3*q+n)}", "XW")

        def xr(k):
            a.ds(f"ds_read_b128 {vr(P+4*k,4)}, {vr(vXRD)} offset:{1024*k}", f"XR{k}")

        self.nfine = 0
        post = []
        for n in range(32):
            self.fine("attn")
            if n == o["h_start"]:
                self.try_poll("L_bpoll", bpoll_issue, btest)
                for r in range(6):
                    h = sum([self.frag_load(k, ar(aH+4*k, 4), sHS, vH0, vH1, "H") for k in range(8*r, 8*r+8)], [])
                    w = self.wr_dma(r)
                    extra += [([w[0]], w[1:3] + h[0:3], [], []), ([], w[3:5] + h[3:6], [], []), ([w[5]], [w[6]] + h[6:8], [w[7]], [h[8]])]
            cur = extra.pop(0) if extra else ([], [], [], [])
            kvl, kadv = self.kv_loads(n + 3) if n + 3 < 32 else ([], [])
            for q in range(4):
                tau = 4 * n + q
                ex(tau, 0)
                ex(tau, 1)
                if tau:
                    a(self.pv(tau - 1, 1))
                if tau == 0:
                    ld, adv = self.kv_loads(2)
                    self.flush(ld)
                    post = adv
                if q == (0 if n else 1):
                    self.flush(kvl)
                if q == (1 if n else 3):
                    self.pop([kadv], 2)
                if q == 2:
                    if n + 1 < 32:
                        a.wait(vm=f"KV{n+1}")
                    if n == o["sig_kt"]:
                        a.wait(vm="PUB")
                        a("s_barrier")
                        a(f"s_cmp_lg_u32 {sr(sW)}, 0")
                        a("s_cbranch_scc1 L_nosigb")
                        a(f"s_lshl_b32 {sr(sT0)}, {sr(sI)}, 1")
                        a(f"s_and_b32 {sr(sT1)}, {sr(sJ)}, 1")
                        a(f"s_add_u32 {sr(sT0)}, {sr(sT0)}, {sr(sT1)}")
                        a(f"s_lshl_b32 {sr(sT0)}, {sr(sT0)}, 2")
                        a(f"v_mov_b32 {vr(vT0)}, 0x100")
                        a("s_mov_b64 exec, 1")
                        a(f"buffer_atomic_add {vr(vT0)}, off, {sr(sDBG,4)}, {sr(sT0)} sc1")
                        a("s_mov_b64 exec, -1")
                        a.label("L_nosigb")
                if q == 3:
                    self.flush(cur[1])
                    if n == o["rl_kt"][0]:
                        for k in range(5):
                            self.relayout_load(k)
                    if n == o["rl_kt"][1]:
                        a.wait(vm="RL")
                        for k in range(5):
                            a.vmem(f"buffer_store_dwordx4 {ar(aRL+4*k,4)}, {vr(vRLD[k])}, {sr(sRD,4)}, {sr(sRLD)} offen sc1", "PUB")
                    if n == o["poll_kt"]:
                        bpoll_issue()
                if tau == 126:
                    for k in range(3):
                        xw(0, k)
                if tau == 127:
                    a.wait(vm="WR5", lg="XW")
                    a("s_barrier")
                    for k in range(3):
                        xr(k)
                for e in (2, 3, 4):
                    ex(tau, e)
                if tau + 2 < 128:
                    m8, m16 = self.qk(tau + 2)
                    a(m8)
                for e in (5, 6, 7, 8):
                    ex(tau, e)
                if tau + 2 < 128:
                    a(m16)
                for e in (9, 10, 11, 12):
                    ex(tau, e)
                a(self.pv(tau, 0))
                self.flush({0: post, 1: kadv if n else [], 2: cur[0], 3: cur[2] if n else kadv}[q])
                if q == 3:
                    post = cur[3]
                if tau == 126:
                    for k in range(3):
                        xw(1, k)
                if tau == 127:
                    for k in range(3, 6):
                        xr(k)
                    a.ds(f"ds_read_b32 {vr(vG0)}, {vr(vGA)}", "XG")
                for e in (13, 14, 15):
                    ex(tau, e)
        assert not extra
        self.fine("attn", True)
        a.wait(lg="XR2")
        a("s_nop 0")
        a(self.pv(127, 1))
        self.stamp(5)

    def attn_epilogue(self):
        a = self.a
        P = vF
        L = vS + 8
        R = vS + 32
        a.label("L_fin")
        for k in range(2):
            O = vO + 32 + 16 * k
            l0, l1 = L + 2 * k, L + 2 * k + 1
            if k:
                a.wait(lg="XR5")
                a("s_nop 1")
            a(f"v_add_f32 {vr(l0)}, {vr(O+8)}, {vr(P+12*k+8)}")
            a(f"v_add_f32 {vr(l1)}, {vr(O+8)}, {vr(P+12*k+8)}")
            for r in range(0, 4, 2):
                a(f"v_pk_add_f32 {vr(O+r,2)}, {vr(O+r,2)}, {vr(P+12*k+r,2)}")
            a(f"v_permlane32_swap_b32 {vr(l0)}, {vr(l1)}")
            for r in range(4, 12, 2):
                a(f"v_pk_add_f32 {vr(O+r,2)}, {vr(O+r,2)}, {vr(P+12*k+r,2)}")
        a(f"v_cmp_nge_f32_e64 {sr(sM0,2)}, {vr(L+1)}, {sr(sLO)}")
        a(f"v_cmp_nle_f32_e64 {sr(sM1,2)}, {vr(L+1)}, {sr(sHIB)}")
        a(f"v_cmp_nge_f32_e64 vcc, {vr(L+3)}, {sr(sLO)}")
        a(f"v_rcp_f32 {vr(L)}, {vr(L+1)}")
        a(f"s_or_b64 {sr(sM0,2)}, {sr(sM0,2)}, {sr(sM1,2)}")
        a(f"v_cmp_nle_f32_e64 {sr(sM1,2)}, {vr(L+3)}, {sr(sHIB)}")
        a(f"s_or_b64 {sr(sM0,2)}, {sr(sM0,2)}, vcc")
        a(f"v_rcp_f32 {vr(L+2)}, {vr(L+3)}")
        a.wait(lg="XG")
        a(f"s_or_b64 {sr(sM0,2)}, {sr(sM0,2)}, {sr(sM1,2)}")
        if self.o["force_slow"]:
            a(f"s_mov_b32 {sr(sM0)}, 1")
        a(f"s_or_b32 {sr(sM0)}, {sr(sM0)}, {sr(sM0+1)}")
        a(f"s_andn2_b32 {sr(sM0)}, {sr(sM0)}, {sr(sSLOW)}")
        a("s_cbranch_scc1 L_slow")
        rd = self.w_read_list(0) + self.w_read_list(1)
        for k in range(2):
            O = vO + 32 + 16 * k
            l0 = L + 2 * k
            a(f"v_mul_f32 {vr(l0)}, {vr(l0)}, {vr(vG0)}")
            for r in range(0, 12, 2):
                a(f"v_pk_mul_f32 {vr(O+r,2)}, {vr(O+r,2)}, {vr(l0,2)} op_sel_hi:[1,0]")
            for p in range(6):
                d = R + 4 * k + p if p < 4 else R + 8 + 2 * k + (p - 4)
                a(f"v_cvt_pk_bf16_f32 {vr(d)}, {vr(O+2*p)}, {vr(O+2*p+1)}")
            a.vmem(f"buffer_store_dwordx4 {vr(R+4*k,4)}, {vr(vOST)}, {sr(sWS,4)}, {sr(sOST)} offen offset:{512*k} sc1", "OPUB")
            if k == 0:
                for _ in range(10):
                    rd.pop(0)()
        a("s_mov_b32 exec_hi, 0")
        a.vmem(f"buffer_store_dwordx4 {vr(R+8,4)}, {vr(vOST)}, {sr(sWS,4)}, {sr(sOST)} offen offset:1024 sc1", "OPUB")
        a("s_mov_b32 exec_hi, -1")
        a.ds(f"ds_read_b32 {vr(vG0)}, {vr(vGB)}", "W1")
        a(f"v_xor_b32 {vr(vGB)}, 64, {vr(vGB)}")
        a.ds(f"ds_read_b32 {vr(vG1)}, {vr(vGB)}", "W1")
        self.rd1 = rd
        self.stamp(6)

    def w_read_list(self, ks):
        a = self.a
        slot = (ks % 12) * 5120
        wf = vW2 + 20 * (ks % 3)
        return [(lambda ct=ct, e=e: a.ds(f"ds_read_b64_tr_b16 {vr(wf+4*ct+2*e,2)}, {vr(vP2R)} offset:{slot + 1280*e + 8*ct}", f"W{ks}"))
                for ct in range(5) for e in range(2)]

    def phase2(self):
        a = self.a
        o = self.o
        vFL = 72

        def opoll_issue():
            a.vmem(f"buffer_load_dwordx4 {vr(vFL,4)}, off, {sr(sWS,4)}, {sr(sFLW)} sc1", "POLL")

        def otest():
            a(f"v_and_b32 {vr(vFL)}, {vr(vFL)}, {vr(vFL+1)}")
            a(f"v_and_b32 {vr(vFL+2)}, {vr(vFL+2)}, {vr(vFL+3)}")
            a(f"v_and_b32 {vr(vFL)}, {vr(vFL)}, {vr(vFL+2)}")
            a(f"v_cmp_ne_u32 vcc, 1, {vr(vFL)}")
            a("s_nop 4")

        def mfmas(ks):
            wf = vW2 + 20 * (ks % 3)
            mf = []
            for ct in range(5):
                for rr in range(2):
                    acc = vACC + 20 * rr + 4 * ct
                    b = ar(aH + 4 * (2 * ks + rr), 4) if ks < 24 else vr(vOF + 4 * (2 * (ks - 24) + rr), 4)
                    cin = "0" if ks == 0 else vr(acc, 4)
                    mf.append((acc, rr, f"v_mfma_f32_16x16x32_bf16 {vr(acc,4)}, {vr(wf+4*ct,4)}, {b}, {cin}"))
            return mf

        fill = []
        self.nfine = 0
        for ks in range(32):
            self.fine("p2")
            r = ks // 2
            if ks == o["opoll_ks"][0]:
                fill.insert(0, (0, opoll_issue))
            if ks == o["opoll_ks"][1]:
                self.try_poll("L_opoll", opoll_issue, otest)
                self.stamp(7)
                fill = sorted(fill + [(24 + k // 2, it) for k in range(20) for it in self.frag_load(k, vr(vOF+4*k, 4), sOS, vO0, vO1, 'O')], key=lambda x: x[0])
            if ks == 24:
                self.stamp(8)
            a.wait(vm=(f"H{ks}" if ks < 24 else f"O{ks-24}"), lg=f"W{ks}")
            rd = (self.rd1 if ks == 0 else []) + self.w_read_list(ks + 2)
            mf = mfmas(ks)
            if ks == 1:
                a(f"v_sub_f32 {vr(vG0)}, 1.0, {vr(vG0)}")
                a(f"v_sub_f32 {vr(vG1)}, 1.0, {vr(vG1)}")

            def scale(k):
                acc, rr, _ = mf[k]
                g = vG1 if rr else vG0
                for h in range(2):
                    a(f"v_pk_mul_f32 {vr(acc+2*h,2)}, {vr(acc+2*h,2)}, {vr(g,2)} op_sel_hi:[1,0]")
            if ks == 24:
                scale(0)
            for k in range(10):
                if ks == 24:
                    if k < 9:
                        scale(k + 1)
                    else:
                        a("s_nop 1")
                a(mf[k][2])
                if k == 0 and ks % 2 == 0 and 1 <= r <= 15:
                    tags = [f"WR{r+1}"] + (["OPUB"] if r == o["oflag_round"] else [])
                    a.wait(vm=tags)
                    a("s_barrier")
                    if r == o["oflag_round"]:
                        a(f"s_cmp_lg_u32 {sr(sW)}, 0")
                        a("s_cbranch_scc1 L_nosigo")
                        a(f"v_mov_b32 {vr(vT0)}, 1")
                        a("s_mov_b64 exec, 1")
                        a(f"buffer_store_dword {vr(vT0)}, off, {sr(sWS,4)}, {sr(sFLS)} sc1")
                        a("s_mov_b64 exec, -1")
                        a.label("L_nosigo")
                    if r + 5 <= 16:
                        fill = sorted(fill + [(2 * (r + 4), f) for f in self.wr_dma(r + 5)], key=lambda x: x[0])
                for _ in range(len(rd) // (10 - k)):
                    rd.pop(0)()
                if k == 0:
                    quota = o["p2_rate"]
                if fill and 1 <= k <= 9 and ks != 24 and (not callable(fill[0][1]) or (quota and k >= 10 - 3 * quota)):
                    quota -= callable(fill[0][1])
                    self.emit(fill.pop(0)[1])
        assert not fill
        self.fine("p2", True)
        a.wait(vm="O9", lg="W33")
        mf = mfmas(32) + mfmas(33)
        for m in mf:
            if m[1] == 1:
                a(m[2])
        keep = [m[2] for m in mf if m[1] == 0]
        for k, m in enumerate(keep):
            a(m)
            if k >= 3 and k < 8:
                ct = k - 3
                a.ds(f"ds_write_b128 {vr(vXW)}, {vr(vACC+20+4*ct,4)} offset:{1024*ct}", "FW")
        self.stamp(9)
        a.wait(lg="FW")
        a("s_barrier")
        P = vACC + 20
        for ct in range(5):
            a.ds(f"ds_read_b128 {vr(P+4*ct,4)}, {vr(vXRD)} offset:{1024*ct}", f"FR{ct}")
        R = vACC + 40
        for ct in range(5):
            a.wait(lg=f"FR{ct}")
            for h in range(2):
                a(f"v_pk_add_f32 {vr(vACC+4*ct+2*h,2)}, {vr(vACC+4*ct+2*h,2)}, {vr(P+4*ct+2*h,2)}")
            for h in range(2):
                a(f"v_cvt_pk_bf16_f32 {vr(R+2*ct+h)}, {vr(vACC+4*ct+2*h)}, {vr(vACC+4*ct+2*h+1)}")
            aux = (" " + o["out_aux"]) if o["out_aux"] else ""
            if ct == 1:
                a(f"buffer_store_dwordx4 {vr(R,4)}, {vr(vOUTA)}, {sr(sOUT,4)}, {sr(sOUTO)} offen{aux}")
            if ct == 3:
                a(f"buffer_store_dwordx4 {vr(R+4,4)}, {vr(vOUTA)}, {sr(sOUT,4)}, {sr(sOUTO)} offen offset:16{aux}")
            if ct == 4:
                a(f"buffer_store_dwordx2 {vr(R+8,2)}, {vr(vOUTA)}, {sr(sOUT,4)}, {sr(sOUTO)} offen offset:32{aux}")
        self.stamp(10)
        if o["echo"]:
            a("s_cmp_lg_u32 s2, 37")
            a("s_cbranch_scc1 L_end")
            a("s_sub_u32 s100, s101, s100")
            if o["echo_cyc"]:
                a("s_mul_i32 s100, s100, 2731")
                a("s_lshr_b32 s100, s100, 16")
            a(f"s_memrealtime {sr(sTS,2)}")
            a("s_waitcnt lgkmcnt(0)")
            a(f"s_mov_b32 s101, {sr(sTS)}")
            a.label("L_echo")
            a(f"s_memrealtime {sr(sTS,2)}")
            a("s_waitcnt lgkmcnt(0)")
            a(f"s_sub_u32 {sr(sTS)}, {sr(sTS)}, s101")
            a(f"s_cmp_lt_u32 {sr(sTS)}, s100")
            a("s_cbranch_scc1 L_echo")
        if o["stamps"]:
            self.lin(sT0, [(2, 1024), (sW, 256)], WS_T)
            a(f"buffer_store_dword v0, {vr(vL4)}, {sr(sWS,4)}, {sr(sT0)} offen")
        a.label("L_end")
        a("s_endpgm")

    def slow(self):
        a = self.a
        a.label("L_slow")
        a.wait_all()
        a(f"s_mov_b32 {sr(sSLOW)}, -1")
        M = vF
        for q in (2, 3):
            a(f"v_mov_b32 {vr(M+q)}, 0xff800000")
        a(f"s_mov_b32 {sr(sKVT)}, 0")
        a(f"s_mov_b64 {sr(sKVS,2)}, {sr(sWS,2)}")
        a.label("L_slow_max")
        ld, adv = self.kv_loads(0, 4096)
        self.flush(ld[:2] + adv)
        a.wait_all()
        for q in (2, 3):
            for s in self.qk(q):
                a(s)
        a("s_nop 15")
        for q in (2, 3):
            for r in range(0, 16, 2):
                a(f"v_max3_f32 {vr(M+q)}, {vr(vS+16*q+r)}, {vr(vS+16*q+r+1)}, {vr(M+q)}")
        a(f"s_cmp_lg_u32 {sr(sKVT)}, 0")
        a("s_cbranch_scc1 L_slow_max")
        for q in (2, 3):
            a(f"v_mov_b32 {vr(M+4+q)}, {vr(M+q)}")
        a("s_nop 1")
        for q in (2, 3):
            a(f"v_permlane32_swap_b32 {vr(M+q)}, {vr(M+4+q)}")
        for q in (2, 3):
            a(f"v_max_f32 {vr(M+q)}, {vr(M+q)}, {vr(M+4+q)}")
        for q in (2, 3):
            m, hi, mid, lo = M + q, M + 8, M + 9, M + 10
            a(f"v_sub_f32 {vr(m)}, 0, {vr(m)}")
            a(f"v_and_b32 {vr(hi)}, 0xffff0000, {vr(m)}")
            a(f"v_sub_f32 {vr(m)}, {vr(m)}, {vr(hi)}")
            a(f"v_and_b32 {vr(mid)}, 0xffff0000, {vr(m)}")
            a(f"v_sub_f32 {vr(m)}, {vr(m)}, {vr(mid)}")
            a(f"v_lshrrev_b32 {vr(lo)}, 16, {vr(m)}")
            a(f"v_lshrrev_b32 {vr(hi)}, 16, {vr(hi)}")
            a(f"v_or_b32 {vr(hi)}, {vr(hi)}, {vr(mid)}")
            a(f"v_cndmask_b32_e64 {vr(vQ+6*q+4)}, {vr(vQ+6*q+4)}, {vr(hi)}, {sr(sHI,2)}")
            a(f"v_cndmask_b32_e64 {vr(vQ+6*q+5)}, {vr(vQ+6*q+5)}, {vr(lo)}, {sr(sHI,2)}")
        for r in range(32):
            a(f"v_mov_b32 {vr(vO+32+r)}, 0")
        for r in range(24):
            a(f"v_mov_b32 {vr(vF+r)}, 0")
        a.label("L_slow_pv")
        ld, adv = self.kv_loads(0, 4096)
        self.flush(ld + adv)
        a.wait_all()
        for q in (2, 3):
            for s in self.qk(q):
                a(s)
        a("s_nop 15")
        for r in range(32, 64):
            a(f"v_exp_f32 {vr(vS+r)}, {vr(vS+r)}")
        a("s_nop 1")
        for q in (2, 3):
            for f in range(2):
                a(self.pv(q, f))
        a(f"s_cmp_lg_u32 {sr(sKVT)}, 0")
        a("s_cbranch_scc1 L_slow_pv")
        a("s_nop 15")
        a("s_branch L_fin")

    def build(self):
        a = self.a
        self.seg("pro"); self.prologue(); self.endseg()
        snap = a.snapshot()
        ends = []
        for role in (0, 1, 2, 3):
            a.restore(snap)
            self.seg(f"q{role}"); self.qpass(role); self.endseg()
            ends.append([list(a.vm.q), list(a.lg.q)])
        assert ends[0] == ends[1] == ends[2] == ends[3], ends
        self.seg("main")
        self.ffn1()
        self.attention()
        self.attn_epilogue()
        self.phase2()
        self.endseg()
        self.seg("slow"); self.slow(); self.endseg()
        bad = []
        for role in range(4):
            bad += check_path(self.segs["pro"] + self.segs[f"q{role}"] + self.segs["main"], f"role{role}")
        m = self.segs["main"]
        i0, i1 = m.index("L_fin:"), m.index("s_cbranch_scc1 L_slow")
        bad += check_path(m[:i1 + 1] + self.segs["slow"] + m[i0:], "slow")
        for b in sorted(set(x.split(": ", 1)[1] for x in bad))[:12]:
            print("HAZARD", b, file=sys.stderr)
        head = open(os.path.join(os.path.dirname(os.path.abspath(__file__)), "..", "cdna_kernels", NAME + ".s.ref")).read()
        head = head[:head.index("; Override launch geometry")]
        txt = head + f"; @launch grid=(256,1,1) block=(256,1,1) lds={LDS_BYTES}\n"
        txt += f""".amdgcn_target "amdgcn-amd-amdhsa--gfx950"
.text
.globl {NAME}_kernel
.p2align 8
.type {NAME}_kernel,@function
{NAME}_kernel:
""" + a.text() + f""".section .rodata,"a"
.p2align 6
.amdhsa_kernel {NAME}_kernel
  .amdhsa_next_free_vgpr 512
  .amdhsa_next_free_sgpr 102
  .amdhsa_accum_offset 256
  .amdhsa_group_segment_fixed_size 0
  .amdhsa_kernarg_size 96
  .amdhsa_user_sgpr_count 2
  .amdhsa_user_sgpr_kernarg_segment_ptr 1
  .amdhsa_system_sgpr_workgroup_id_x 1
.end_amdhsa_kernel
"""
        return txt, bad


if __name__ == "__main__":
    import ast
    out = sys.argv[1]
    opt = {}
    for kv in sys.argv[2:]:
        k, v = kv.split("=", 1)
        try:
            v = ast.literal_eval(v)
        except Exception:
            pass
        opt[k] = v
    txt, bad = Gen(**opt).build()
    open(out, "w").write(txt)
    print("wrote", out, len(txt), "bytes;", len(bad), "hazards")
```

```python
import sys, os, math
sys.path.insert(0, os.path.dirname(os.path.abspath(__file__)))
from asmlib import *

NAME = "gated_mix__grouped_kv_mqa__dense_activation_relu__prompt"
OPT = dict(code_pf=True, map='A', rot=(5, 2, 1, 1), rl_kt=(0, 4), p2_rate=3, echo=None, echo_cyc=False, stamps=False, force_slow=False, out_aux="", h_start=13, sig_kt=6, poll_kt=11, oflag_round=3, opoll_ks=(14, 18), kvpoll_u=66, kvtest_u=72)

WS_KV = 0
WS_H = 1 << 20
WS_O = 8 << 20
WS_W = 12 << 20
WS_F = 16 << 20
WS_T = 17 << 20
WS_SIZE = 268435456
SL = 2176 * 160
KH = 34 * 5120
SLOT = 24576
GIMG = 5 * SLOT
GARR = GIMG + 2560
BADF = GARR + 256
XCH = BADF + 256
LDS_BYTES = XCH + 24576
HIB = 57344
REGION = 12 * 5120
sSL = 3
sX, sWQ, sKV, sW1, sWS, sDBG, sOUT, sG, sRL, sRD = 4, 8, 12, 16, 20, 24, 28, 32, 36, 40
sKVS, sHS, sWR, sOS = sX, sWQ, sKV, sG
pX, pWQ, pWK, pWV, pWO, pW1, pW2, pG, pOUT, pDBG, pWS = 44, 46, 48, 50, 52, 56, 58, 60, 62, 64, 66
pKV = 48
sT4, sT5, sZR = 50, 51, 52
sRLS, sRLD = 54, 55
sKVT, sSPIN, sHST, sOST, sFLW, sFLS = 58, 59, 60, 61, 62, 63
sM0, sM1 = 64, 66
sI, sJ, sW, sT, sCH, sROLE, sKL, sMW = 68, 69, 70, 71, 72, 73, 74, 75
sSLOW, sLO, sHIB, sOUTO, sWRM, sTA = 76, 77, 78, 79, 80, 81
sHI = 90
sONE = 92
sTS = 94
sT0, sT1, sT2, sT3 = 96, 97, 98, 99
vLANE, vXD, vWQD, vL16, vXD2, vKVD = 1, 2, 3, 6, 7, 8
vXR, vWQR, vKVR, vW1R, vGR, vGD = 10, 18, 20, 22, 28, 29
vT0, vT1 = 30, 31
vQA, vQB, vTH = 32, 48, 64
vS = 32
vRLS, vRLD = (232, 233, 234, 235, 250), (251, 252, 253, 254, 255)
vO = 96
vWF = 96
vW1D = 132
vF = 160
vQ = 208
vIDX, vKVV, vKVK8, vPOLL = 2, 3, 4, 5
vG0, vG1 = 8, 10
vHST, vOST, vXW, vXRD, vP2R, vOUTA, vGA, vGB, vL4 = 236, 237, 238, 239, 240, 241, 242, 243, 244
vH0, vH1, vO0, vO1, vL16B = 245, 246, 247, 248, 249
vACC, vOF, vW2 = 32, 96, 176
aKV, aX, aH, aRL = 0, 64, 64, 224
OOR = 0x80000000
SPIN_MAX = 1 << 20

C_SCALE = math.log2(math.e) / math.sqrt(20.0)


def f2u(x):
    import struct
    return struct.unpack("<I", struct.pack("<f", x))[0]


def lds_ref(vlo, vhi, off):
    if off < 65536:
        return f"{vr(vlo)} offset:{off}"
    return f"{vr(vhi)} offset:{off-HIB}"


class Gen:
    def __init__(self, **opt):
        self.o = dict(OPT)
        self.o.update(opt)
        self.a = Asm()
        self.segs = {}
        self.nstamp = 0
        self.nfine = 0

    def seg(self, name):
        self._cur = (name, len(self.a.lines))

    def endseg(self):
        n, s = self._cur
        self.segs[n] = self.a.lines[s:]

    def stamp(self, idx):
        a = self.a
        if self.o["echo"] and idx in self.o["echo"]:
            a(f"{'s_memtime' if self.o['echo_cyc'] else 's_memrealtime'} {sr(sTS,2)}")
            a("s_waitcnt lgkmcnt(0)")
            a.lg.clear()
            a(f"s_mov_b32 s{100 + self.o['echo'].index(idx)}, {sr(sTS)}")
        if not self.o["stamps"]:
            return
        if idx < 0:
            a("s_memtime s[100:101]")
            a(f"s_memrealtime {sr(sTS,2)}")
            a("s_waitcnt lgkmcnt(0)")
            a(f"s_mov_b32 s101, {sr(sTS)}")
            return
        a("s_memtime s[100:101]")
        a(f"s_memrealtime {sr(sTS,2)}")
        a("s_waitcnt lgkmcnt(0)")
        a.lg.clear()
        a(f"v_writelane_b32 v0, s100, {idx}")
        a(f"v_writelane_b32 v0, {sr(sTS)}, {16+idx}")

    def fine(self, group, last=False):
        if self.o["stamps"] and self.o.get("fine") == group:
            a = self.a
            if group == "pro":
                a("s_memtime s[0:1]")
                a("s_waitcnt lgkmcnt(0)")
                a(f"v_writelane_b32 v0, s0, {32 + self.nfine}")
                self.nfine += 1
                return
            if self.nfine:
                a(f"v_writelane_b32 v0, s0, {31 + self.nfine}")
            if not last:
                a("s_memtime s[0:1]")
            self.nfine += 1

    def srd(self, s, p, n):
        a = self.a
        a(f"s_mov_b32 {sr(s)}, {sr(p)}")
        a(f"s_mov_b32 {sr(s+1)}, {sr(p+1)}")
        a(f"s_mov_b32 {sr(s+2)}, {n}")
        a(f"s_mov_b32 {sr(s+3)}, 0x20000")

    def lin(self, dst, terms, const=0):
        a = self.a
        (r0, k0), rest = terms[0], terms[1:]
        a(f"s_mul_i32 {sr(dst)}, {sr(r0)}, {k0}")
        for r, k in rest:
            if k == 1:
                a(f"s_add_u32 {sr(dst)}, {sr(dst)}, {sr(r)}")
            else:
                a(f"s_mul_i32 {sr(sT3)}, {sr(r)}, {k}")
                a(f"s_add_u32 {sr(dst)}, {sr(dst)}, {sr(sT3)}")
        if const:
            a(f"s_add_u32 {sr(dst)}, {sr(dst)}, {const}")

    def prologue(self):
        a = self.a
        a("s_cmp_ge_u32 s2, 0x100")
        a("s_cbranch_scc1 L_end")
        self.stamp(-1)
        a(f"s_load_dwordx8 {sr(pX,8)}, s[0:1], 0")
        a(f"s_load_dwordx8 {sr(pG,8)}, s[0:1], 64")
        a(f"s_load_dwordx8 {sr(pWO,8)}, s[0:1], 32")
        if self.o["code_pf"]:
            a(f"s_getpc_b64 {sr(sT0,2)}")
            a(f"s_mov_b32 {sr(sT2)}, L_code_end-.-4")
            a(f"s_lshr_b32 {sr(sT3)}, s2, 3")
            a(f"s_lshl_b32 {sr(sT3)}, {sr(sT3)}, 11")
            a(f"v_lshl_add_u32 {vr(vT0)}, v0, 7, {sr(sT3)}")
            a(f"v_min_u32 {vr(vT0)}, {sr(sT2)}, {vr(vT0)}")
            a(f"v_mov_b32 {vr(vQ+3)}, {sr(sT1)}")
            a(f"v_add_co_u32 {vr(vQ+4)}, vcc, {sr(sT0)}, {vr(vT0)}")
            a("s_nop 1")
            a(f"v_addc_co_u32 {vr(vQ+5)}, vcc, 0, {vr(vQ+3)}, vcc")
            a("v_cmp_gt_u32 vcc, 16, v0")
            a(f"s_and_saveexec_b64 {sr(sT0,2)}, vcc")
            a("s_cbranch_execz L_nopf")
            a(f"global_load_dword {vr(vQ)}, {vr(vQ+4,2)}, off")
            a.label("L_nopf")
            a("s_mov_b64 exec, -1")
        a(f"v_lshrrev_b32 {vr(vT0)}, 6, v0")
        a(f"v_and_b32 {vr(vLANE)}, 63, v0")
        a(f"v_readfirstlane_b32 {sr(sW)}, {vr(vT0)}")
        ra, rk, rb, rc = self.o["rot"]
        if self.o["map"] == "A":
            a(f"s_and_b32 {sr(sI)}, s2, 31")
            a(f"s_lshr_b32 {sr(sJ)}, s2, 5")
            a(f"s_lshr_b32 {sr(sT0)}, {sr(sI)}, 3")
            a(f"s_mov_b32 {sr(sT1)}, {sr(sJ)}")
            a(f"s_and_b32 {sr(sT2)}, {sr(sI)}, 7")
        else:
            a(f"s_bfe_u32 {sr(sT0)}, s2, 0x30003")
            a(f"s_and_b32 {sr(sT2)}, s2, 3")
            a(f"s_lshl2_add_u32 {sr(sI)}, {sr(sT0)}, {sr(sT2)}")
            a(f"s_lshr_b32 {sr(sT1)}, s2, 6")
            a(f"s_and_b32 {sr(sJ)}, s2, 4")
            a(f"s_add_u32 {sr(sJ)}, {sr(sJ)}, {sr(sT1)}")
        a(f"s_and_b32 {sr(sT0)}, {sr(sT0)}, {rk-1}")
        self.lin(sT0, [(sT0, ra), (sT1, rb), (sT2, rc)])
        a(f"s_mul_i32 {sr(sT1)}, {sr(sT0)}, 205")
        a(f"s_lshr_b32 {sr(sT1)}, {sr(sT1)}, 11")
        a(f"s_mul_i32 {sr(sT1)}, {sr(sT1)}, 10")
        a(f"s_sub_u32 {sr(sKL)}, {sr(sT0)}, {sr(sT1)}")
        a(f"s_and_b32 {sr(sT)}, {sr(sW)}, 1")
        a(f"s_lshr_b32 {sr(sCH)}, {sr(sW)}, 1")
        a(f"v_lshlrev_b32 {vr(vL16)}, 4, {vr(vLANE)}")
        a(f"s_lshl_b32 {sr(sT0)}, {sr(sW)}, 2")
        a(f"v_lshrrev_b32 {vr(vT0)}, 4, {vr(vLANE)}")
        a(f"v_add_u32 {vr(vT0)}, {sr(sT0)}, {vr(vT0)}")
        a(f"v_xor_b32 {vr(vT0)}, {vr(vT0)}, {vr(vLANE)}")
        a(f"v_and_b32 {vr(vT0)}, 7, {vr(vT0)}")
        self.lin(sT0, [(sI, 64*1280), (sW, 8*1280)])
        a(f"v_lshl_add_u32 {vr(vT0)}, {vr(vT0)}, 4, {sr(sT0)}")
        a(f"v_lshrrev_b32 {vr(vT1)}, 3, {vr(vLANE)}")
        a(f"s_movk_i32 {sr(sT1)}, 1280")
        a(f"v_mad_u32_u24 {vr(vXD)}, {vr(vT1)}, {sr(sT1)}, {vr(vT0)}")
        a(f"v_add_u32 {vr(vXD2)}, {32*1280-1024}, {vr(vXD)}")
        self.lin(sT0, [(sW, 16*1280), (sJ, 160)])
        a(f"v_add_u32 {vr(vKVD)}, {sr(sT0)}, {vr(vL16)}")
        for n in range(3):
            a(f"v_add_u32 {vr(vT0)}, {64*n}, {vr(vLANE)}")
            a(f"v_mul_u32_u24 {vr(vT1)}, 0x19a, {vr(vT0)}")
            a(f"v_lshrrev_b32 {vr(vT1)}, 12, {vr(vT1)}")
            a(f"v_mul_u32_u24 {vr(vT1)}, {1280-160}, {vr(vT1)}")
            a(f"v_add_u32 {vr(vWQD+n)}, {vr(vKVD)}, {vr(vT1)}")
        a(f"v_cmp_gt_u32 vcc, 32, {vr(vLANE)}")
        a(f"v_mov_b32 {vr(vT0)}, {hex(OOR)}")
        a(f"s_mul_i32 {sr(sT0)}, {sr(sW)}, 640")
        a(f"v_cndmask_b32 {vr(vWQD+2)}, {vr(vT0)}, {vr(vWQD+2)}, vcc")
        a(f"v_cmp_gt_u32 vcc, 40, {vr(vLANE)}")
        a(f"v_add_u32 {vr(vKVD)}, {sr(sT0)}, {vr(vL16)}")
        a(f"s_mul_i32 {sr(sMW)}, {sr(sW)}, 6144")
        a(f"v_cndmask_b32 {vr(vKVD)}, {vr(vT0)}, {vr(vKVD)}, vcc")
        for s_, n in ((sX, 2048*1280), (sWQ, 640*1280), (sG, 1280)):
            a(f"s_mov_b32 {sr(s_+2)}, {n}")
            a(f"s_mov_b32 {sr(s_+3)}, 0x20000")
        a(f"s_bitcmp0_b32 {sr(sJ)}, 0")
        a(f"s_cselect_b32 {sr(sKV+2)}, {640*40+2048}, 0")
        a(f"s_mov_b32 {sr(sKV+3)}, 0x20000")
        a(f"s_mul_i32 {sr(sT2)}, {sr(sW)}, 320")
        a(f"s_lshl_b32 {sr(sT1)}, {sr(sKL)}, 7")
        a(f"s_add_u32 {sr(sOUTO)}, {sr(sT1)}, {GIMG}")
        if self.o["stamps"]:
            a("v_mov_b32 v0, 0")
            a("v_writelane_b32 v0, s100, 15")
            a("v_writelane_b32 v0, s101, 31")
        self.fine("pro")
        a("s_waitcnt lgkmcnt(0)")
        self.fine("pro")
        a(f"s_bitcmp1_b32 {sr(sJ)}, 1")
        a(f"s_cselect_b64 {sr(pKV,2)}, {sr(pWV,2)}, {sr(pWK,2)}")
        a(f"s_sub_u32 {sr(pKV)}, {sr(pKV)}, 2048")
        a(f"s_subb_u32 {sr(pKV+1)}, {sr(pKV+1)}, 0")
        a(f"s_mov_b64 {sr(sG,2)}, {sr(pG,2)}")
        self.flush(self.load_stage(0))
        a(f"s_add_u32 m0, {sr(sT2)}, {GIMG}")
        a("s_mov_b64 exec, 0xfffff")
        a.vmem(f"buffer_load_dwordx4 {vr(vL16)}, {sr(sG,4)}, {sr(sT2)} offen lds", "L0")
        a(f"s_add_u32 m0, {sr(sT2)}, {GIMG+1280}")
        a("s_nop 0")
        a.vmem(f"buffer_load_dwordx4 {vr(vL16)}, {sr(sG,4)}, {sr(sT2)} offen lds", "L0")
        a("s_mov_b64 exec, -1")
        self.fine("pro")
        self.flush(self.load_stage(1))
        self.fine("pro")
        if self.o.get("w1_prefetch"):
            self.lin(sT0, [(2, 4*1920), (sW, 1920)])
            a(f"s_add_u32 {sr(sW1)}, {sr(pW1)}, {sr(sT0)}")
            a(f"s_addc_u32 {sr(sW1+1)}, {sr(pW1+1)}, 0")
            for k in range(15):
                a(f"s_load_dword {sr(82+k%8)}, {sr(sW1,2)}, {128*k}")
            a.lg.issue("F0")
        a(f"s_mov_b32 {sr(sW1+2)}, {640*3072}")
        a(f"s_mov_b32 {sr(sW1+3)}, 0x20000")
        self.srd(sWS, pWS, WS_SIZE)
        self.srd(sDBG, pDBG, 256)
        self.srd(sOUT, pOUT, 2048*1280)
        self.relayout_setup()
        a(f"s_mov_b32 {sr(sHI)}, 0")
        a(f"s_mov_b32 {sr(sHI+1)}, -1")
        a(f"s_mov_b32 {sr(sONE)}, 0x100000")
        a(f"s_mov_b32 {sr(sONE+1)}, 0x100000")
        a(f"s_mov_b32 {sr(sZR)}, 0xffe00000")
        a(f"s_mov_b32 {sr(sZR+1)}, 0xffe00000")
        a(f"s_lshr_b32 {sr(sT0)}, {sr(sJ)}, 2")
        a(f"s_add_u32 {sr(sT0)}, {sr(sT0)}, 2")
        a(f"s_bfe_u32 {sr(sT1)}, {sr(sJ)}, 0x10001")
        a(f"s_add_u32 {sr(sT1)}, {sr(sT1)}, 1")
        a(f"s_cmp_eq_u32 {sr(sT0)}, {sr(sW)}")
        a(f"s_cselect_b32 {sr(sROLE)}, {sr(sT1)}, 3")
        a(f"s_bitcmp1_b32 {sr(sJ)}, 0")
        a(f"s_cselect_b32 {sr(sROLE)}, 3, {sr(sROLE)}")
        a(f"s_cmp_eq_u32 {sr(sCH)}, 0")
        a(f"s_cselect_b32 {sr(sROLE)}, 0, {sr(sROLE)}")
        a(f"v_and_b32 {vr(vT0)}, 31, {vr(vLANE)}")
        self.lin(sT0, [(sT, 128)], GARR)
        a(f"v_lshl_add_u32 {vr(vGA)}, {vr(vT0)}, 2, {sr(sT0)}")
        a(f"v_lshrrev_b32 {vr(vT0)}, 3, {vr(vT0)}")
        a(f"v_mul_u32_u24 {vr(vT0)}, 6144, {vr(vT0)}")
        a(f"v_and_b32 {vr(vT1)}, 7, {vr(vLANE)}")
        a(f"v_lshl_add_u32 {vr(vT0)}, {vr(vT1)}, 7, {vr(vT0)}")
        a(f"v_bfe_u32 {vr(vT1)}, {vr(vLANE)}, 1, 3")
        a(f"v_lshrrev_b32 {vr(vGR)}, 5, {vr(vLANE)}")
        a(f"v_xor_b32 {vr(vT1)}, {vr(vT1)}, {vr(vGR)}")
        a(f"v_lshl_add_u32 {vr(vT0)}, {vr(vT1)}, 4, {vr(vT0)}")
        self.lin(sT0, [(sT, 1024)], 3072)
        a(f"v_add_u32 {vr(vXR)}, {sr(sT0)}, {vr(vT0)}")
        for s_ in range(1, 4):
            a(f"v_xor_b32 {vr(vXR+s_)}, {32*s_}, {vr(vXR)}")
        for s_ in range(4):
            a(f"v_add_u32 {vr(vXR+4+s_)}, {HIB}, {vr(vXR+s_)}")
        a(f"v_bfe_u32 {vr(vT0)}, {vr(vLANE)}, 2, 2")
        a(f"v_lshl_add_u32 {vr(vT0)}, {vr(vGR)}, 3, {vr(vT0)}")
        a(f"v_bfe_u32 {vr(vT1)}, {vr(vLANE)}, 4, 1")
        a(f"v_and_b32 {vr(vGD)}, 3, {vr(vLANE)}")
        a(f"v_lshl_add_u32 {vr(vT1)}, {vr(vT1)}, 2, {vr(vGD)}")
        a(f"v_min_u32 {vr(vGD)}, 4, {vr(vT1)}")
        a(f"v_lshlrev_b32 {vr(vGD)}, 3, {vr(vGD)}")
        a(f"v_mul_u32_u24 {vr(vWQR)}, 160, {vr(vT0)}")
        a(f"s_mul_i32 {sr(sT0)}, {sr(sCH)}, 80")
        a(f"v_add3_u32 {vr(vWQR)}, {vr(vWQR)}, {vr(vGD)}, {sr(sT0)}")
        a(f"v_add_u32 {vr(vWQR+1)}, {HIB}, {vr(vWQR)}")
        a(f"v_mad_u32_u24 {vr(vKVR)}, {vr(vT0)}, 40, {vr(vGD)}")
        a(f"v_add_u32 {vr(vKVR+1)}, {HIB}, {vr(vKVR)}")
        a(f"v_mul_u32_u24 {vr(vGD)}, 384, {vr(vT0)}")
        a(f"v_lshl_add_u32 {vr(vGD)}, {vr(vT1)}, 3, {vr(vGD)}")
        a(f"v_bfe_u32 {vr(vT1)}, {vr(vLANE)}, 3, 1")
        a(f"s_mul_i32 {sr(sT0)}, {sr(sCH)}, 3")
        for ct in range(3):
            a(f"s_add_u32 {sr(sT1)}, {sr(sT0)}, {ct}")
            a(f"v_xor_b32 {vr(vT0)}, {sr(sT1)}, {vr(vT1)}")
            a(f"v_lshl_add_u32 {vr(vW1R+ct)}, {vr(vT0)}, 6, {vr(vGD)}")
            a(f"v_add_u32 {vr(vW1R+3+ct)}, {HIB}, {vr(vW1R+ct)}")
        a(f"v_lshl_add_u32 {vr(vGR)}, {vr(vGR)}, 4, {sr(sOUTO)}")
        self.lin(sT0, [(sW, 6144)], XCH)
        a(f"v_add_u32 {vr(vXW)}, {sr(sT0)}, {vr(vL16)}")
        a(f"s_xor_b32 {sr(sT1)}, {sr(sW)}, 2")
        self.lin(sT0, [(sT1, 6144)], XCH)
        a(f"v_add_u32 {vr(vXRD)}, {sr(sT0)}, {vr(vL16)}")
        a(f"s_movk_i32 {sr(sT1)}, 3072")
        self.lin(sT0, [(sW, 16*3072), (sJ, 384)])
        for n in range(3):
            a(f"v_add_u32 {vr(vT0)}, {64*n}, {vr(vLANE)}")
            a(f"v_mul_u32_u24 {vr(vT1)}, 0xab, {vr(vT0)}")
            a(f"v_lshrrev_b32 {vr(vT1)}, 12, {vr(vT1)}")
            a(f"v_mul_u32_u24 {vr(vL4)}, 24, {vr(vT1)}")
            a(f"v_sub_u32 {vr(vT0)}, {vr(vT0)}, {vr(vL4)}")
            a(f"v_lshlrev_b32 {vr(vL4)}, 1, {vr(vT1)}")
            a(f"v_and_b32 {vr(vL4)}, 4, {vr(vL4)}")
            a(f"v_xor_b32 {vr(vT0)}, {vr(vT0)}, {vr(vL4)}")
            a(f"v_lshl_add_u32 {vr(vT0)}, {vr(vT0)}, 4, {sr(sT0)}")
            a(f"v_mad_u32_u24 {vr(vW1D+n)}, {vr(vT1)}, {sr(sT1)}, {vr(vT0)}")
            a(f"v_add_u32 {vr(vW1D+3+n)}, {8*3072 - (3072, 0, 1024)[n]}, {vr(vW1D+n)}")
            if n:
                a(f"v_subrev_u32 {vr(vW1D+n)}, {1024*n}, {vr(vW1D+n)}")
        for n in range(5):
            self.relayout_addr(n)
        self.fine("pro")
        self.stamp(0)
        for role in (1, 2, 3):
            a(f"s_cmp_eq_u32 {sr(sROLE)}, {role}")
            a(f"s_cbranch_scc1 L_qpass_{role}")

    def late_setup(self):
        a = self.a
        keep, a.lines = a.lines, []
        a(f"v_lshlrev_b32 {vr(vL4)}, 2, {vr(vLANE)}")
        mark = len(a.lines)
        a(f"v_mov_b32 {vr(vIDX)}, 0xdddd")
        a(f"v_lshlrev_b32 {vr(vKVK8)}, 3, {vr(vLANE)}")
        a(f"v_and_b32 {vr(vKVV)}, 31, {vr(vLANE)}")
        a(f"v_min_u32 {vr(vKVV)}, 21, {vr(vKVV)}")
        a(f"v_and_or_b32 {vr(vKVV)}, {vr(vLANE)}, 32, {vr(vKVV)}")
        a(f"v_lshlrev_b32 {vr(vKVV)}, 4, {vr(vKVV)}")
        self.lin(sKVT, [(sI, 8192), (sCH, 4096)])
        a(f"v_lshrrev_b32 {vr(vT1)}, 5, {vr(vLANE)}")
        a(f"v_and_b32 {vr(vT0)}, 15, {vr(vLANE)}")
        a(f"v_lshlrev_b32 {vr(vOUTA)}, 4, {vr(vT0)}")
        a(f"v_lshl_add_u32 {vr(vOUTA)}, {vr(vT1)}, 8, {vr(vOUTA)}")
        a(f"v_bfe_u32 {vr(vT1)}, {vr(vLANE)}, 4, 1")
        a(f"v_mul_u32_u24 {vr(vHST)}, 49152, {vr(vT1)}")
        a(f"v_add_u32 {vr(vHST)}, {vr(vHST)}, {vr(vOUTA)}")
        a(f"v_mul_u32_u24 {vr(vOST)}, 20480, {vr(vT1)}")
        a(f"v_add_u32 {vr(vOST)}, {vr(vOST)}, {vr(vOUTA)}")
        self.lin(sHST, [(sI, 196608), (sT, 2*49152), (sJ, 6144), (sCH, 3072)], WS_H)
        self.lin(sOST, [(sI, 81920), (sT, 40960), (sJ, 2560), (sCH, 1280)], WS_O)
        self.lin(sT0, [(sT, 2), (sCH, 1)])
        a(f"s_xor_b32 {sr(sT1)}, {sr(sT0)}, 1")
        for v, s_, k in ((vH0, sT0, 49152), (vH1, sT1, 49152), (vO0, sT0, 20480), (vO1, sT1, 20480)):
            a(f"s_mul_i32 {sr(sT3)}, {sr(s_)}, {k}")
            a(f"v_add_u32 {vr(v)}, {sr(sT3)}, {vr(vL16)}")
        a(f"v_add_u32 {vr(vL16B)}, 4096, {vr(vL16)}")
        self.lin(sOUTO, [(sI, 64*1280), (sT0, 16*1280), (sJ, 160)])
        self.lin(sT1, [(sT0, 64)], GARR)
        a(f"v_lshl_add_u32 {vr(vGB)}, {vr(vT0)}, 2, {sr(sT1)}")
        a(f"v_mul_u32_u24 {vr(vT0)}, 1280, {vr(vT0)}")
        a(f"v_lshrrev_b32 {vr(vT1)}, 4, {vr(vLANE)}")
        a(f"v_mad_u32_u24 {vr(vOUTA)}, {vr(vT1)}, 40, {vr(vT0)}")
        for srd, terms, const in ((sHS, [(sI, 196608), (sCH, 24*1024)], WS_H), (sOS, [(sI, 81920), (sCH, 10240)], WS_O),
                                  (sWR, [(sJ, SL), (sCH, KH), (sT, 5120)], WS_W)):
            self.lin(sT1, terms, const)
            a.lines.append((f"s_add_u32 {sr(srd)}, {sr(sWS)}, {sr(sT1)}", f"s_addc_u32 {sr(srd+1)}, {sr(sWS+1)}, 0"))
            a(f"s_mov_b32 {sr(srd+2)}, 0x100000")
        a.lines.append((f"s_add_u32 {sr(sKVS)}, {sr(sWS)}, {sr(sKVT)}", f"s_addc_u32 {sr(sKVS+1)}, {sr(sWS+1)}, 0"))
        a(f"s_mov_b32 {sr(sKVS+2)}, 4096")
        self.lin(sWRM, [(sCH, REGION), (sT, 5120)])
        self.lin(sFLW, [(sI, 128), (sCH, 16)], WS_F)
        self.lin(sFLS, [(sI, 128), (sJ, 4)], WS_F)
        a(f"v_lshrrev_b32 {vr(vT0)}, 5, {vr(vLANE)}")
        a(f"v_bfe_u32 {vr(vT1)}, {vr(vLANE)}, 2, 3")
        a(f"v_lshl_add_u32 {vr(vT0)}, {vr(vT0)}, 4, {vr(vT1)}")
        a(f"v_mul_u32_u24 {vr(vT0)}, 160, {vr(vT0)}")
        a(f"v_and_b32 {vr(vT1)}, 3, {vr(vLANE)}")
        a(f"v_mad_u32_u24 {vr(vT0)}, {vr(vT1)}, 40, {vr(vT0)}")
        a(f"s_mul_i32 {sr(sT0)}, {sr(sCH)}, {REGION}")
        a(f"v_add_u32 {vr(vP2R)}, {sr(sT0)}, {vr(vT0)}")
        out, a.lines = a.lines, keep
        return out[:mark], out[mark:]

    def emit(self, it):
        if callable(it):
            it()
            return 1
        if isinstance(it, tuple):
            for l in it:
                self.a(l)
            return len(it)
        self.a(it)
        return 1

    def flush(self, q):
        while q:
            self.emit(q.pop(0))

    def pop(self, queues, budget, nmem=99):
        for q in queues:
            while q and budget > 0:
                if callable(q[0]):
                    if nmem == 0:
                        break
                    nmem -= 1
                budget -= self.emit(q.pop(0))

    def dma(self, v, srd, off, tag, aux=""):
        o = f" offset:{off}" if off else ""
        return lambda: self.a.vmem(f"buffer_load_dwordx4 {vr(v)}, {sr(srd,4)}, 0 offen{o}{aux} lds", tag)

    def base(self, srd, ptr, k):
        return [f"s_mul_i32 {sr(sTA)}, {sr(sKL)}, {k}",
                (f"s_add_u32 {sr(srd)}, {sr(ptr)}, {sr(sTA)}", f"s_addc_u32 {sr(srd+1)}, {sr(ptr+1)}, 0")]

    def load_stage(self, L):
        slot = (L % 5) * SLOT
        tag = f"L{L}"
        adv = [f"s_add_u32 {sr(sKL)}, {sr(sKL)}, 1", (f"s_cmp_eq_u32 {sr(sKL)}, 10", f"s_cselect_b32 {sr(sKL)}, 0, {sr(sKL)}")]
        if L < 10:
            return ([f"s_add_u32 m0, {sr(sMW)}, {slot+3072}"] + self.base(sX, pX, 128)
                    + [self.dma(vXD, sX, 0, tag), self.dma(vXD2, sX, 1024, tag)] + self.base(sKV, pKV, 2560) + [self.dma(vKVD, sKV, 2048, tag)]
                    + [f"s_add_u32 m0, {sr(sMW)}, {slot}"] + self.base(sWQ, pWQ, 64*1280)
                    + [self.dma(vWQD+n, sWQ, 1024*n, tag) for n in range(3)] + adv)
        return ([f"s_add_u32 m0, {sr(sMW)}, {slot}"] + self.base(sW1, pW1, 64*3072)
                + [self.dma(vW1D+n, sW1, 1024*n, tag) for n in range(4)]
                + [f"s_add_u32 m0, {sr(sMW)}, {slot+4096}"] + adv[:1] + [self.dma(vW1D+4, sW1, 0, tag), self.dma(vW1D+5, sW1, 1024, tag)] + adv[1:])

    def frag_reads(self, U, c, role):
        a = self.a
        n, s = U // 4, U % 4
        slot = (n % 5) * SLOT
        wf = vWF + 12 * (U % 3) + 4 * c
        tag = f"F{U}"
        if U < 40:
            if c == 0:
                a.ds(f"ds_read_b128 {ar(aX+4*U,4)}, " + lds_ref(vXR+s, vXR+4+s, slot), tag)
            if c < 2:
                for e in range(2):
                    a.ds(f"ds_read_b64_tr_b16 {vr(wf+2*e,2)}, " + lds_ref(vWQR, vWQR+1, slot + 6144*s + 4*e*160 + 40*c), tag)
            elif role == 0:
                a.ds(f"ds_read_b128 {vr(wf,4)}, {vr(vGR)} offset:{32*U}", tag)
            elif role < 3:
                for e in range(2):
                    a.ds(f"ds_read_b64_tr_b16 {vr(wf+2*e,2)}, " + lds_ref(vKVR, vKVR+1, slot + 6144*s + 5120 + 4*e*40), tag)
        else:
            for e in range(2):
                a.ds(f"ds_read_b64_tr_b16 {vr(wf+2*e,2)}, " + lds_ref(vW1R+c, vW1R+3+c, slot + (16*s+4*e)*384), tag)

    def p1_step(self, U, role, fill, small, after_barrier=None):
        a = self.a
        n, s = U // 4, U % 4
        wf = vWF + 12 * (U % 3)
        x = ar(aX + 4 * (U % 40), 4)
        a.wait(lg=f"F{U}")
        for c in range(3):
            if not (U < 40 and c == 2 and role == 3):
                acc = (vQA + 16 * c) if U < 40 else (vF + 16 * c)
                cin = "0" if U % 40 == 0 else vr(acc, 16)
                if U < 40 and c == 2 and role == 2:
                    a(f"v_mfma_f32_32x32x16_bf16 {vr(acc,16)}, {x}, {vr(wf+4*c,4)}, {cin}")
                else:
                    a(f"v_mfma_f32_32x32x16_bf16 {vr(acc,16)}, {vr(wf+4*c,4)}, {x}, {cin}")
            budget = self.o.get("p1_budget", 3) - (c == 2) - (U < 38 and c == 0)
            if c == 0 and s == 2 and n < 19:
                self.flush(fill)
                a.wait(vm=f"L{n+1}")
                a("s_barrier")
                budget -= 2
                self.nfine = n + 1
                self.fine("p1")
                if after_barrier:
                    after_barrier()
                if n + 3 <= 19:
                    fill += self.load_stage(n + 3)
            if U + 2 < 80:
                self.frag_reads(U + 2, c, role)
            self.pop([fill, small], budget, (3 * U + c) % 2 if U >= 3 else 2)

    def qpass(self, role):
        a = self.a
        a.label(f"L_qpass_{role}")
        a.wait(vm="L0")
        a("s_barrier")
        if self.o.get("fine") == "pro":
            self.nfine = 5
            self.fine("pro")
        self.nfine = 0
        self.fine("p1")
        fill = self.load_stage(2)
        for U in range(2):
            for c in range(3):
                self.frag_reads(U, c, role)
        for U in range(40):
            self.p1_step(U, role, fill, [])
        self.left = self.load_stage(12)[-len(fill):] if fill else []
        self.stamp(1)
        a("s_nop 4")
        for hd in range(2):
            acc = vQA + 16 * hd
            q = vQ + 12 + 6 * hd
            for p in range(6):
                a(f"v_cvt_pk_bf16_f32 {vr(q+p)}, {vr(acc+2*p)}, {vr(acc+2*p+1)}")
            for p in (4, 5):
                a(f"v_cndmask_b32_e64 {vr(q+p)}, {vr(q+p)}, 0, {sr(sHI,2)}")
        for n in range(3):
            a.ds(f"ds_write_b128 {vr(vXW)}, {vr(vQ+12+4*n,4)} offset:{1024*n}", "QW")
        th = vTH
        if role == 0:
            a(f"v_mul_f32 {vr(th)}, {hex(f2u(-math.log2(math.e)))}, {vr(th)}")
            a(f"v_exp_f32 {vr(th)}, {vr(th)}")
            a("s_nop 0")
            a(f"v_add_f32 {vr(th)}, 1.0, {vr(th)}")
            a(f"v_rcp_f32 {vr(th)}, {vr(th)}")
            a("s_nop 0")
            a.ds(f"ds_write_b32 {vr(vGA)}, {vr(th)}", "QW")
        elif role < 3:
            self.lin(sT0, [(sI, 8192), (sT, 4096)])
            if role == 1:
                a(f"s_mov_b32 {sr(sT1)}, {hex(f2u(C_SCALE))}")
                for r in range(12):
                    a(f"v_mul_f32 {vr(th+r)}, {sr(sT1)}, {vr(th+r)}")
                for p in range(6):
                    a(f"v_cvt_pk_bf16_f32 {vr(th+p)}, {vr(th+2*p)}, {vr(th+2*p+1)}")
                a(f"v_mov_b32 {vr(th+6)}, 0x3f803f80")
                a(f"v_mov_b32 {vr(th+7)}, 0x3f80")
                a(f"v_cndmask_b32_e64 {vr(th+4)}, {vr(th+4)}, {vr(th+6)}, {sr(sHI,2)}")
                a(f"v_cndmask_b32_e64 {vr(th+5)}, {vr(th+5)}, {vr(th+7)}, {sr(sHI,2)}")
                a(f"v_and_b32 {vr(vT0)}, 0x33, {vr(vLANE)}")
                a(f"v_bfe_u32 {vr(vT1)}, {vr(vLANE)}, 2, 1")
                a(f"v_lshl_or_b32 {vr(vT0)}, {vr(vT1)}, 3, {vr(vT0)}")
                a(f"v_bfe_u32 {vr(vT1)}, {vr(vLANE)}, 3, 1")
                a(f"v_lshl_or_b32 {vr(vT0)}, {vr(vT1)}, 2, {vr(vT0)}")
                a(f"v_lshlrev_b32 {vr(vT1)}, 3, {vr(vT0)}")
                a(f"v_lshlrev_b32 {vr(vT0)}, 4, {vr(vT0)}")
                a(f"buffer_store_dwordx4 {vr(th,4)}, {vr(vT0)}, {sr(sWS,4)}, {sr(sT0)} offen sc1")
                a(f"buffer_store_dwordx2 {vr(th+4,2)}, {vr(vT1)}, {sr(sWS,4)}, {sr(sT0)} offen offset:3072 sc1")
                a(f"s_cmp_lg_u32 {sr(sJ)}, 0")
                a("s_cbranch_scc1 L_noclear")
                self.lin(sT0, [(sI, 128)], WS_F)
                a(f"v_mov_b32 {vr(th+8)}, 0")
                a(f"v_lshlrev_b32 {vr(vT0)}, 2, {vr(vLANE)}")
                a("s_mov_b64 exec, 0xff")
                a(f"buffer_store_dword {vr(th+8)}, {vr(vT0)}, {sr(sWS,4)}, {sr(sT0)} offen sc1")
                a("s_mov_b64 exec, -1")
                a.label("L_noclear")
            else:
                for p in range(8):
                    a(f"v_cvt_pk_bf16_f32 {vr(th+p)}, {vr(th+2*p)}, {vr(th+2*p+1)}")
                a(f"v_mov_b32 {vr(th+8)}, 0x3f803f80")
                for p in range(8):
                    a(f"v_cndmask_b32_e64 {vr(th+p)}, {vr(th+p)}, {vr(th+8)}, {sr(sONE,2)}")
                    a(f"v_cndmask_b32_e64 {vr(th+p)}, {vr(th+p)}, 0, {sr(sZR,2)}")
                a(f"buffer_store_dwordx4 {vr(th,4)}, {vr(vL16)}, {sr(sWS,4)}, {sr(sT0)} offen offset:1024 sc1")
                a(f"buffer_store_dwordx4 {vr(th+4,4)}, {vr(vL16)}, {sr(sWS,4)}, {sr(sT0)} offen offset:2048 sc1")
        a.wait_all(vm=False)
        if role != 3:
            a("s_branch L_ffn1")

    def relayout_setup(self):
        a = self.a
        D, P, E, O_, G_ = sT0, sT1, sT2, sT3, sT4
        a(f"s_lshl_b32 {sr(D)}, s2, 1")
        a(f"s_add_u32 {sr(D)}, {sr(D)}, {sr(sW)}")
        a(f"s_add_u32 {sr(P)}, s2, 512")
        a(f"s_cmp_lt_u32 {sr(sW)}, 2")
        a(f"s_cselect_b32 {sr(D)}, {sr(D)}, {sr(P)}")
        a(f"s_cmp_eq_u32 {sr(sW)}, 3")
        a(f"s_cselect_b32 {sr(D)}, 1000, {sr(D)}")
        a(f"s_cmp_ge_u32 {sr(D)}, 192")
        a(f"s_cselect_b32 {sr(P)}, {KH - 192*640}, 0")
        a(f"s_mul_i32 {sr(sRLD)}, {sr(D)}, 640")
        a(f"s_add_u32 {sr(sRLD)}, {sr(sRLD)}, {sr(P)}")
        a(f"s_lshl_b32 {sr(sRLS)}, {sr(D)}, 2")
        a(f"s_mov_b32 {sr(sRL)}, {sr(pW2)}")
        a(f"s_mov_b32 {sr(sRL+1)}, {sr(pW2+1)}")
        a(f"s_mov_b32 {sr(sRL+2)}, {1536*1280}")
        a(f"s_mov_b32 {sr(sRL+3)}, 0x20000")
        a(f"s_mov_b32 {sr(sRD)}, {sr(pWS)}")
        a(f"s_mov_b32 {sr(sRD+1)}, {sr(pWS+1)}")
        a(f"s_mov_b32 {sr(sRD+2)}, {WS_SIZE}")
        a(f"s_mov_b32 {sr(sRD+3)}, 0x20000")
        a(f"s_cmp_lt_u32 {sr(D)}, 384")
        a("s_cbranch_scc1 L_rl_done")
        a(f"s_mov_b32 {sr(sRL)}, {sr(pWO)}")
        a(f"s_mov_b32 {sr(sRL+1)}, {sr(pWO+1)}")
        a(f"s_cmp_lt_u32 {sr(D)}, 544")
        a(f"s_cselect_b32 {sr(sRL+2)}, {640*1280}, 0")
        a(f"s_cselect_b32 {sr(sRD+2)}, {WS_SIZE}, 0")
        a(f"s_cselect_b32 {sr(D)}, {sr(D)}, 384")
        a(f"s_sub_u32 {sr(D)}, {sr(D)}, 384")
        a(f"s_cmp_ge_u32 {sr(D)}, 80")
        a(f"s_cselect_b32 {sr(P)}, {KH - 80*640}, 0")
        a(f"s_mul_i32 {sr(sRLD)}, {sr(D)}, 640")
        a(f"s_add_u32 {sr(sRLD)}, {sr(sRLD)}, {sr(P)}")
        a(f"s_add_u32 {sr(sRLD)}, {sr(sRLD)}, {24*5120}")
        a(f"s_bfe_u32 {sr(E)}, {sr(D)}, 0x10001")
        a(f"s_lshr_b32 {sr(O_)}, {sr(D)}, 2")
        a(f"s_lshl_b32 {sr(O_)}, {sr(O_)}, 1")
        a(f"s_and_b32 {sr(G_)}, {sr(D)}, 1")
        a(f"s_add_u32 {sr(O_)}, {sr(O_)}, {sr(G_)}")
        a(f"s_mul_i32 {sr(P)}, {sr(O_)}, 205")
        a(f"s_lshr_b32 {sr(P)}, {sr(P)}, 10")
        a(f"s_mul_i32 {sr(G_)}, {sr(P)}, 5")
        a(f"s_sub_u32 {sr(O_)}, {sr(O_)}, {sr(G_)}")
        a(f"s_mul_i32 {sr(P)}, {sr(P)}, 40")
        a(f"s_lshr_b32 {sr(G_)}, {sr(O_)}, 1")
        a(f"s_mul_i32 {sr(G_)}, {sr(G_)}, 20")
        a(f"s_and_b32 {sr(sT5)}, {sr(O_)}, 1")
        a(f"s_lshl_b32 {sr(sT5)}, {sr(sT5)}, 2")
        a(f"s_add_u32 {sr(G_)}, {sr(G_)}, {sr(sT5)}")
        a(f"s_lshl_b32 {sr(sT5)}, {sr(E)}, 3")
        a(f"s_add_u32 {sr(G_)}, {sr(G_)}, {sr(sT5)}")
        a(f"s_mul_i32 {sr(E)}, {sr(E)}, 20")
        a(f"s_add_u32 {sr(E)}, {sr(E)}, 16")
        a(f"s_cmp_eq_u32 {sr(O_)}, 4")
        a(f"s_cselect_b32 {sr(G_)}, {sr(E)}, {sr(G_)}")
        a(f"s_add_u32 {sr(sRLS)}, {sr(P)}, {sr(G_)}")
        a.label("L_rl_done")
        a(f"s_mul_i32 {sr(sRLS)}, {sr(sRLS)}, 1280")
        a(f"s_add_u32 {sr(sRLD)}, {sr(sRLD)}, {WS_W}")
        a(f"s_mov_b32 {sr(sSL)}, {SL}")

    def relayout_addr(self, n):
        a = self.a
        a(f"v_add_u32 {vr(vT0)}, {64*n}, {vr(vLANE)}")
        a(f"v_mul_u32_u24 {vr(vT1)}, 0xcd, {vr(vT0)}")
        a(f"v_lshrrev_b32 {vr(vT1)}, 13, {vr(vT1)}")
        a(f"v_mul_u32_u24 {vr(vRLS[n])}, 40, {vr(vT1)}")
        a(f"v_sub_u32 {vr(vT0)}, {vr(vT0)}, {vr(vRLS[n])}")
        a(f"v_mul_lo_u32 {vr(vRLD[n])}, {vr(vT1)}, {sr(sSL)}")
        a(f"v_lshl_add_u32 {vr(vRLD[n])}, {vr(vT0)}, 4, {vr(vRLD[n])}")
        a(f"v_mul_u32_u24 {vr(vRLS[n])}, 0xcd, {vr(vT0)}")
        a(f"v_lshrrev_b32 {vr(vRLS[n])}, 11, {vr(vRLS[n])}")
        a(f"v_mul_u32_u24 {vr(vRLS[n])}, {1280-160}, {vr(vRLS[n])}")
        a(f"v_lshl_add_u32 {vr(vRLS[n])}, {vr(vT0)}, 4, {vr(vRLS[n])}")
        a(f"v_mul_u32_u24 {vr(vT1)}, 160, {vr(vT1)}")
        a(f"v_add_u32 {vr(vRLS[n])}, {vr(vRLS[n])}, {vr(vT1)}")

    def relayout_load(self, n):
        self.a.vmem(f"buffer_load_dwordx4 {ar(aRL+4*n,4)}, {vr(vRLS[n])}, {sr(sRL,4)}, {sr(sRLS)} offen", "RL")

    def spin(self, label, issue, test):
        a = self.a
        a(f"s_mov_b32 {sr(sSPIN)}, 0")
        a.label(label)
        a.wait_all(lg=False)
        test()
        a(f"s_cbranch_vccz {label}_ok")
        a(f"s_add_u32 {sr(sSPIN)}, {sr(sSPIN)}, 1")
        a(f"s_cmp_ge_u32 {sr(sSPIN)}, {SPIN_MAX}")
        a(f"s_cbranch_scc1 {label}_ok")
        issue()
        a(f"s_branch {label}")
        a.label(label + "_ok")
        a.vm.clear()

    def kv_loads(self, n, step=8192):
        a = self.a
        b = aKV + 14 * (n % 4)
        tag = f"KV{n}"
        ld = lambda w, r, v, off: (lambda: a.vmem(f"buffer_load_dwordx{w} {ar(r,w)}, {vr(v)}, {sr(sKVS,4)}, 0 offen{f' offset:{off}' if off else ''} sc1", tag))
        adv = [f"s_add_u32 {sr(sKVT)}, {sr(sKVT)}, {step}", f"s_and_b32 {sr(sKVT)}, {sr(sKVT)}, 0x3ffff",
               (f"s_add_u32 {sr(sKVS)}, {sr(sWS)}, {sr(sKVT)}", f"s_addc_u32 {sr(sKVS+1)}, {sr(sWS+1)}, 0")]
        return [ld(4, b, vL16, 0), ld(2, b+12, vKVK8, 3072), ld(4, b+4, vKVV, 1024), ld(4, b+8, vKVV, 2048)], adv

    def try_poll(self, label, issue, test):
        a = self.a
        a.wait(vm="POLL")
        snap = a.snapshot()
        test()
        a(f"s_cbranch_vccz {label}_done")
        issue()
        self.spin(label, issue, test)
        a.label(f"{label}_done")
        a.restore(snap)

    def ffn1(self):
        a = self.a
        o = self.o
        a.label("L_ffn1")
        fill = self.left
        early, late = self.late_setup()
        small = early + late

        def q_read():
            for n in range(3):
                a.ds(f"ds_read_b128 {vr(vQ+4*n,4)}, {vr(vXRD)} offset:{1024*n}", "QR")

        def kv_signal():
            a(f"s_add_u32 {sr(sT2)}, {sr(sROLE)}, 1")
            a(f"s_bitcmp0_b32 {sr(sT2)}, 1")
            a("s_cbranch_scc1 L_nosig")
            a(f"s_lshl_b32 {sr(sT2)}, {sr(sI)}, 1")
            a(f"s_add_u32 {sr(sT2)}, {sr(sT2)}, {sr(sT)}")
            a(f"s_lshl_b32 {sr(sT2)}, {sr(sT2)}, 2")
            a(f"v_mov_b32 {vr(vPOLL)}, 1")
            a("s_mov_b64 exec, 1")
            a(f"buffer_atomic_add {vr(vPOLL)}, off, {sr(sDBG,4)}, {sr(sT2)} sc1")
            a("s_mov_b64 exec, -1")
            a.label("L_nosig")

        def poll_issue():
            a.vmem(f"buffer_load_dword {vr(vPOLL)}, {vr(vL4)}, {sr(sDBG,4)}, 0 offen sc1", "POLL")

        def test():
            a(f"v_and_b32 {vr(vPOLL)}, 0xff, {vr(vPOLL)}")
            a(f"v_cmp_gt_u32 vcc, 2, {vr(vPOLL)}")
            a("s_nop 4")

        for U in range(40, 80):
            n, s = U // 4, U % 4
            ab = {10: q_read, 11: kv_signal}.get(n)
            if U == o["kvpoll_u"]:
                fill.append(poll_issue)
            if U == o["kvtest_u"]:
                assert not small and not fill
                self.try_poll("L_kvpoll", poll_issue, test)
                self.stamp(2)
                for k in range(2):
                    ld, adv = self.kv_loads(k)
                    fill += ld + adv
            self.p1_step(U, 0, fill, small, ab)
        self.flush(fill)
        self.nfine = 20
        self.fine("p1", True)
        self.stamp(3)
        a(f"v_mov_b32 {vr(vT0)}, 0")
        a(f"v_mov_b32 {vr(vT1)}, 0")
        a(f"s_mov_b32 {sr(sSLOW)}, 0")
        a(f"s_mov_b32 {sr(sLO)}, {hex(f2u(2.0**-20))}")
        a(f"s_mov_b32 {sr(sHIB)}, {hex(f2u(2.0**40))}")
        a.wait(vm="KV0", lg="QR")
        pre = list(self.qk(0)) + list(self.qk(1))
        pre += [f"v_mfma_f32_32x32x8_bf16 {vr(vO+16*q,16)}, {vr(vT0,2)}, {vr(vT0,2)}, 0" for q in range(4)]
        a(pre.pop(0))
        a(pre.pop(0))
        a("s_nop 5")
        for ct in range(3):
            for c in range(2):
                b = vF + 16 * ct + 8 * c
                for p in range(4):
                    a(f"v_cvt_pk_bf16_f32 {vr(b+p)}, {vr(b+2*p)}, {vr(b+2*p+1)}")
                for p in range(4):
                    a(f"v_pk_max_i16 {vr(b+p)}, {vr(b+p)}, 0 op_sel_hi:[1,0]")
                a(pre.pop(0))
                a.vmem(f"buffer_store_dwordx4 {vr(b,4)}, {vr(vHST)}, {sr(sWS,4)}, {sr(sHST)} offen offset:{1024*ct+512*c} sc1", "PUB")

    def qk(self, tau):
        n, q = tau // 4, tau % 4
        b = aKV + 14 * (n % 4)
        S = vr(vS + 16 * q, 16)
        return (f"v_mfma_f32_32x32x8_bf16 {S}, {ar(b+12,2)}, {vr(vQ+6*q+4,2)}, 0",
                f"v_mfma_f32_32x32x16_bf16 {S}, {ar(b,4)}, {vr(vQ+6*q,4)}, {S}")

    def pv(self, tau, f):
        n, q = tau // 4, tau % 4
        b = aKV + 14 * (n % 4)
        return f"v_smfmac_f32_32x32x32_bf16 {vr(vO+16*q,16)}, {ar(b+4+4*f,4)}, {vr(vS+16*q+8*f,8)}, {vr(vIDX)}"

    def wr_dma(self, rnd):
        slot = (rnd % 6) * 10240
        tag = f"WR{rnd}"
        return ([f"s_add_u32 m0, {sr(sWRM)}, {slot}"] + [self.dma(vL16, sWR, 1024*n, tag, " sc1") for n in range(4)]
                + [f"s_add_u32 m0, {sr(sWRM)}, {slot+4096}", self.dma(vL16B, sWR, 0, tag, " sc1"),
                   (f"s_add_u32 {sr(sWR)}, {sr(sWR)}, 10240", f"s_addc_u32 {sr(sWR+1)}, {sr(sWR+1)}, 0")])

    def frag_load(self, k, dst, srd, v0, v1, tag):
        ks, rr = k // 2, k % 2
        off = f" offset:{1024*(ks%4)}" if ks % 4 else ""
        it = [lambda: self.a.vmem(f"buffer_load_dwordx4 {dst}, {vr(v1 if rr else v0)}, {sr(srd,4)}, 0 offen{off} sc1", f"{tag}{ks}")]
        if k % 8 == 7:
            it.append((f"s_add_u32 {sr(srd)}, {sr(srd)}, 4096", f"s_addc_u32 {sr(srd+1)}, {sr(srd+1)}, 0"))
        return it

    def attention(self):
        a = self.a
        o = self.o
        self.stamp(4)
        extra = []
        ex = lambda tau, e: a(f"v_exp_f32 {vr(vS+16*(tau%4)+e)}, {vr(vS+16*(tau%4)+e)}")
        P = vF

        def bpoll_issue():
            a.vmem(f"buffer_load_dword {vr(vPOLL)}, {vr(vL4)}, {sr(sDBG,4)}, 0 offen sc1", "POLL")

        def btest():
            a(f"v_cmp_gt_u32 vcc, 0x400, {vr(vPOLL)}")
            a("s_nop 4")

        def xw(q, n):
            a.ds(f"ds_write_b128 {vr(vXW)}, {vr(vO+16*q+4*n,4)} offset:{1024*(3*q+n)}", "XW")

        def xr(k):
            a.ds(f"ds_read_b128 {vr(P+4*k,4)}, {vr(vXRD)} offset:{1024*k}", f"XR{k}")

        self.nfine = 0
        post = []
        for n in range(32):
            self.fine("attn")
            if n == o["h_start"]:
                self.try_poll("L_bpoll", bpoll_issue, btest)
                for r in range(6):
                    h = sum([self.frag_load(k, ar(aH+4*k, 4), sHS, vH0, vH1, "H") for k in range(8*r, 8*r+8)], [])
                    w = self.wr_dma(r)
                    extra += [([w[0]], w[1:3] + h[0:3], [], []), ([], w[3:5] + h[3:6], [], []), ([w[5]], [w[6]] + h[6:8], [w[7]], [h[8]])]
            cur = extra.pop(0) if extra else ([], [], [], [])
            kvl, kadv = self.kv_loads(n + 3) if n + 3 < 32 else ([], [])
            for q in range(4):
                tau = 4 * n + q
                ex(tau, 0)
                ex(tau, 1)
                if tau:
                    a(self.pv(tau - 1, 1))
                if tau == 0:
                    ld, adv = self.kv_loads(2)
                    self.flush(ld)
                    post = adv
                if q == (0 if n else 1):
                    self.flush(kvl)
                if q == (1 if n else 3):
                    self.pop([kadv], 2)
                if q == 2:
                    if n + 1 < 32:
                        a.wait(vm=f"KV{n+1}")
                    if n == o["sig_kt"]:
                        a.wait(vm="PUB")
                        a("s_barrier")
                        a(f"s_cmp_lg_u32 {sr(sW)}, 0")
                        a("s_cbranch_scc1 L_nosigb")
                        a(f"s_lshl_b32 {sr(sT0)}, {sr(sI)}, 1")
                        a(f"s_and_b32 {sr(sT1)}, {sr(sJ)}, 1")
                        a(f"s_add_u32 {sr(sT0)}, {sr(sT0)}, {sr(sT1)}")
                        a(f"s_lshl_b32 {sr(sT0)}, {sr(sT0)}, 2")
                        a(f"v_mov_b32 {vr(vT0)}, 0x100")
                        a("s_mov_b64 exec, 1")
                        a(f"buffer_atomic_add {vr(vT0)}, off, {sr(sDBG,4)}, {sr(sT0)} sc1")
                        a("s_mov_b64 exec, -1")
                        a.label("L_nosigb")
                if q == 3:
                    self.flush(cur[1])
                    if n == o["rl_kt"][0]:
                        for k in range(5):
                            self.relayout_load(k)
                    if n == o["rl_kt"][1]:
                        a.wait(vm="RL")
                        for k in range(5):
                            a.vmem(f"buffer_store_dwordx4 {ar(aRL+4*k,4)}, {vr(vRLD[k])}, {sr(sRD,4)}, {sr(sRLD)} offen sc1", "PUB")
                    if n == o["poll_kt"]:
                        bpoll_issue()
                if tau == 126:
                    for k in range(3):
                        xw(0, k)
                if tau == 127:
                    a.wait(vm="WR5", lg="XW")
                    a("s_barrier")
                    for k in range(3):
                        xr(k)
                for e in (2, 3, 4):
                    ex(tau, e)
                if tau + 2 < 128:
                    m8, m16 = self.qk(tau + 2)
                    a(m8)
                for e in (5, 6, 7, 8):
                    ex(tau, e)
                if tau + 2 < 128:
                    a(m16)
                for e in (9, 10, 11, 12):
                    ex(tau, e)
                a(self.pv(tau, 0))
                self.flush({0: post, 1: kadv if n else [], 2: cur[0], 3: cur[2] if n else kadv}[q])
                if q == 3:
                    post = cur[3]
                if tau == 126:
                    for k in range(3):
                        xw(1, k)
                if tau == 127:
                    for k in range(3, 6):
                        xr(k)
                    a.ds(f"ds_read_b32 {vr(vG0)}, {vr(vGA)}", "XG")
                for e in (13, 14, 15):
                    ex(tau, e)
        assert not extra
        self.fine("attn", True)
        a.wait(lg="XR2")
        a("s_nop 0")
        a(self.pv(127, 1))
        self.stamp(5)

    def attn_epilogue(self):
        a = self.a
        P = vF
        L = vS + 8
        R = vS + 32
        a.label("L_fin")
        for k in range(2):
            O = vO + 32 + 16 * k
            l0, l1 = L + 2 * k, L + 2 * k + 1
            if k:
                a.wait(lg="XR5")
                a("s_nop 1")
            a(f"v_add_f32 {vr(l0)}, {vr(O+8)}, {vr(P+12*k+8)}")
            a(f"v_add_f32 {vr(l1)}, {vr(O+8)}, {vr(P+12*k+8)}")
            for r in range(0, 4, 2):
                a(f"v_pk_add_f32 {vr(O+r,2)}, {vr(O+r,2)}, {vr(P+12*k+r,2)}")
            a(f"v_permlane32_swap_b32 {vr(l0)}, {vr(l1)}")
            for r in range(4, 12, 2):
                a(f"v_pk_add_f32 {vr(O+r,2)}, {vr(O+r,2)}, {vr(P+12*k+r,2)}")
        a(f"v_cmp_nge_f32_e64 {sr(sM0,2)}, {vr(L+1)}, {sr(sLO)}")
        a(f"v_cmp_nle_f32_e64 {sr(sM1,2)}, {vr(L+1)}, {sr(sHIB)}")
        a(f"v_cmp_nge_f32_e64 vcc, {vr(L+3)}, {sr(sLO)}")
        a(f"v_rcp_f32 {vr(L)}, {vr(L+1)}")
        a(f"s_or_b64 {sr(sM0,2)}, {sr(sM0,2)}, {sr(sM1,2)}")
        a(f"v_cmp_nle_f32_e64 {sr(sM1,2)}, {vr(L+3)}, {sr(sHIB)}")
        a(f"s_or_b64 {sr(sM0,2)}, {sr(sM0,2)}, vcc")
        a(f"v_rcp_f32 {vr(L+2)}, {vr(L+3)}")
        a.wait(lg="XG")
        a(f"s_or_b64 {sr(sM0,2)}, {sr(sM0,2)}, {sr(sM1,2)}")
        if self.o["force_slow"]:
            a(f"s_mov_b32 {sr(sM0)}, 1")
        a(f"s_or_b32 {sr(sM0)}, {sr(sM0)}, {sr(sM0+1)}")
        a(f"s_andn2_b32 {sr(sM0)}, {sr(sM0)}, {sr(sSLOW)}")
        a("s_cbranch_scc1 L_slow")
        rd = self.w_read_list(0) + self.w_read_list(1)
        for k in range(2):
            O = vO + 32 + 16 * k
            l0 = L + 2 * k
            a(f"v_mul_f32 {vr(l0)}, {vr(l0)}, {vr(vG0)}")
            for r in range(0, 12, 2):
                a(f"v_pk_mul_f32 {vr(O+r,2)}, {vr(O+r,2)}, {vr(l0,2)} op_sel_hi:[1,0]")
            for p in range(6):
                d = R + 4 * k + p if p < 4 else R + 8 + 2 * k + (p - 4)
                a(f"v_cvt_pk_bf16_f32 {vr(d)}, {vr(O+2*p)}, {vr(O+2*p+1)}")
            a.vmem(f"buffer_store_dwordx4 {vr(R+4*k,4)}, {vr(vOST)}, {sr(sWS,4)}, {sr(sOST)} offen offset:{512*k} sc1", "OPUB")
            if k == 0:
                for _ in range(10):
                    rd.pop(0)()
        a("s_mov_b32 exec_hi, 0")
        a.vmem(f"buffer_store_dwordx4 {vr(R+8,4)}, {vr(vOST)}, {sr(sWS,4)}, {sr(sOST)} offen offset:1024 sc1", "OPUB")
        a("s_mov_b32 exec_hi, -1")
        a.ds(f"ds_read_b32 {vr(vG0)}, {vr(vGB)}", "W1")
        a(f"v_xor_b32 {vr(vGB)}, 64, {vr(vGB)}")
        a.ds(f"ds_read_b32 {vr(vG1)}, {vr(vGB)}", "W1")
        self.rd1 = rd
        self.stamp(6)

    def w_read_list(self, ks):
        a = self.a
        slot = (ks % 12) * 5120
        wf = vW2 + 20 * (ks % 3)
        return [(lambda ct=ct, e=e: a.ds(f"ds_read_b64_tr_b16 {vr(wf+4*ct+2*e,2)}, {vr(vP2R)} offset:{slot + 1280*e + 8*ct}", f"W{ks}"))
                for ct in range(5) for e in range(2)]

    def phase2(self):
        a = self.a
        o = self.o
        vFL = 72

        def opoll_issue():
            a.vmem(f"buffer_load_dwordx4 {vr(vFL,4)}, off, {sr(sWS,4)}, {sr(sFLW)} sc1", "POLL")

        def otest():
            a(f"v_and_b32 {vr(vFL)}, {vr(vFL)}, {vr(vFL+1)}")
            a(f"v_and_b32 {vr(vFL+2)}, {vr(vFL+2)}, {vr(vFL+3)}")
            a(f"v_and_b32 {vr(vFL)}, {vr(vFL)}, {vr(vFL+2)}")
            a(f"v_cmp_ne_u32 vcc, 1, {vr(vFL)}")
            a("s_nop 4")

        def mfmas(ks):
            wf = vW2 + 20 * (ks % 3)
            mf = []
            for ct in range(5):
                for rr in range(2):
                    acc = vACC + 20 * rr + 4 * ct
                    b = ar(aH + 4 * (2 * ks + rr), 4) if ks < 24 else vr(vOF + 4 * (2 * (ks - 24) + rr), 4)
                    cin = "0" if ks == 0 else vr(acc, 4)
                    mf.append((acc, rr, f"v_mfma_f32_16x16x32_bf16 {vr(acc,4)}, {vr(wf+4*ct,4)}, {b}, {cin}"))
            return mf

        fill = []
        self.nfine = 0
        for ks in range(32):
            self.fine("p2")
            r = ks // 2
            if ks == o["opoll_ks"][0]:
                fill.insert(0, (0, opoll_issue))
            if ks == o["opoll_ks"][1]:
                self.try_poll("L_opoll", opoll_issue, otest)
                self.stamp(7)
                fill = sorted(fill + [(24 + k // 2, it) for k in range(20) for it in self.frag_load(k, vr(vOF+4*k, 4), sOS, vO0, vO1, 'O')], key=lambda x: x[0])
            if ks == 24:
                self.stamp(8)
            a.wait(vm=(f"H{ks}" if ks < 24 else f"O{ks-24}"), lg=f"W{ks}")
            rd = (self.rd1 if ks == 0 else []) + self.w_read_list(ks + 2)
            mf = mfmas(ks)
            if ks == 1:
                a(f"v_sub_f32 {vr(vG0)}, 1.0, {vr(vG0)}")
                a(f"v_sub_f32 {vr(vG1)}, 1.0, {vr(vG1)}")

            def scale(k):
                acc, rr, _ = mf[k]
                g = vG1 if rr else vG0
                for h in range(2):
                    a(f"v_pk_mul_f32 {vr(acc+2*h,2)}, {vr(acc+2*h,2)}, {vr(g,2)} op_sel_hi:[1,0]")
            if ks == 24:
                scale(0)
            for k in range(10):
                if ks == 24:
                    if k < 9:
                        scale(k + 1)
                    else:
                        a("s_nop 1")
                a(mf[k][2])
                if k == 0 and ks % 2 == 0 and 1 <= r <= 15:
                    tags = [f"WR{r+1}"] + (["OPUB"] if r == o["oflag_round"] else [])
                    a.wait(vm=tags)
                    a("s_barrier")
                    if r == o["oflag_round"]:
                        a(f"s_cmp_lg_u32 {sr(sW)}, 0")
                        a("s_cbranch_scc1 L_nosigo")
                        a(f"v_mov_b32 {vr(vT0)}, 1")
                        a("s_mov_b64 exec, 1")
                        a(f"buffer_store_dword {vr(vT0)}, off, {sr(sWS,4)}, {sr(sFLS)} sc1")
                        a("s_mov_b64 exec, -1")
                        a.label("L_nosigo")
                    if r + 5 <= 16:
                        fill = sorted(fill + [(2 * (r + 4), f) for f in self.wr_dma(r + 5)], key=lambda x: x[0])
                for _ in range(len(rd) // (10 - k)):
                    rd.pop(0)()
                if k == 0:
                    quota = o["p2_rate"]
                if fill and 1 <= k <= 9 and ks != 24 and (not callable(fill[0][1]) or (quota and k >= 10 - 3 * quota)):
                    quota -= callable(fill[0][1])
                    self.emit(fill.pop(0)[1])
        assert not fill
        self.fine("p2", True)
        a.wait(vm="O9", lg="W33")
        mf = mfmas(32) + mfmas(33)
        for m in mf:
            if m[1] == 1:
                a(m[2])
        keep = [m[2] for m in mf if m[1] == 0]
        for k, m in enumerate(keep):
            a(m)
            if k >= 3 and k < 8:
                ct = k - 3
                a.ds(f"ds_write_b128 {vr(vXW)}, {vr(vACC+20+4*ct,4)} offset:{1024*ct}", "FW")
        self.stamp(9)
        a.wait(lg="FW")
        a("s_barrier")
        P = vACC + 20
        for ct in range(5):
            a.ds(f"ds_read_b128 {vr(P+4*ct,4)}, {vr(vXRD)} offset:{1024*ct}", f"FR{ct}")
        R = vACC + 40
        for ct in range(5):
            a.wait(lg=f"FR{ct}")
            for h in range(2):
                a(f"v_pk_add_f32 {vr(vACC+4*ct+2*h,2)}, {vr(vACC+4*ct+2*h,2)}, {vr(P+4*ct+2*h,2)}")
            for h in range(2):
                a(f"v_cvt_pk_bf16_f32 {vr(R+2*ct+h)}, {vr(vACC+4*ct+2*h)}, {vr(vACC+4*ct+2*h+1)}")
            aux = (" " + o["out_aux"]) if o["out_aux"] else ""
            if ct == 1:
                a(f"buffer_store_dwordx4 {vr(R,4)}, {vr(vOUTA)}, {sr(sOUT,4)}, {sr(sOUTO)} offen{aux}")
            if ct == 3:
                a(f"buffer_store_dwordx4 {vr(R+4,4)}, {vr(vOUTA)}, {sr(sOUT,4)}, {sr(sOUTO)} offen offset:16{aux}")
            if ct == 4:
                a(f"buffer_store_dwordx2 {vr(R+8,2)}, {vr(vOUTA)}, {sr(sOUT,4)}, {sr(sOUTO)} offen offset:32{aux}")
        self.stamp(10)
        if o["echo"]:
            a("s_cmp_lg_u32 s2, 37")
            a("s_cbranch_scc1 L_end")
            a("s_sub_u32 s100, s101, s100")
            if o["echo_cyc"]:
                a("s_mul_i32 s100, s100, 2731")
                a("s_lshr_b32 s100, s100, 16")
            a(f"s_mul_i32 s100, s100, {o.get('echo_mul', 4)}")
            a(f"s_memrealtime {sr(sTS,2)}")
            a("s_waitcnt lgkmcnt(0)")
            a(f"s_mov_b32 s101, {sr(sTS)}")
            a.label("L_echo")
            a(f"s_memrealtime {sr(sTS,2)}")
            a("s_waitcnt lgkmcnt(0)")
            a(f"s_sub_u32 {sr(sTS)}, {sr(sTS)}, s101")
            a(f"s_cmp_lt_u32 {sr(sTS)}, s100")
            a("s_cbranch_scc1 L_echo")
        if o["stamps"]:
            self.lin(sT0, [(2, 1024), (sW, 256)], WS_T)
            a(f"buffer_store_dword v0, {vr(vL4)}, {sr(sWS,4)}, {sr(sT0)} offen")
        a.label("L_end")
        a("s_endpgm")

    def slow(self):
        a = self.a
        a.label("L_slow")
        a.wait_all()
        a(f"s_mov_b32 {sr(sSLOW)}, -1")
        M = vF
        for q in (2, 3):
            a(f"v_mov_b32 {vr(M+q)}, 0xff800000")
        a(f"s_mov_b32 {sr(sKVT)}, 0")
        a(f"s_mov_b64 {sr(sKVS,2)}, {sr(sWS,2)}")
        a.label("L_slow_max")
        ld, adv = self.kv_loads(0, 4096)
        self.flush(ld[:2] + adv)
        a.wait_all()
        for q in (2, 3):
            for s in self.qk(q):
                a(s)
        a("s_nop 15")
        for q in (2, 3):
            for r in range(0, 16, 2):
                a(f"v_max3_f32 {vr(M+q)}, {vr(vS+16*q+r)}, {vr(vS+16*q+r+1)}, {vr(M+q)}")
        a(f"s_cmp_lg_u32 {sr(sKVT)}, 0")
        a("s_cbranch_scc1 L_slow_max")
        for q in (2, 3):
            a(f"v_mov_b32 {vr(M+4+q)}, {vr(M+q)}")
        a("s_nop 1")
        for q in (2, 3):
            a(f"v_permlane32_swap_b32 {vr(M+q)}, {vr(M+4+q)}")
        for q in (2, 3):
            a(f"v_max_f32 {vr(M+q)}, {vr(M+q)}, {vr(M+4+q)}")
        for q in (2, 3):
            m, hi, mid, lo = M + q, M + 8, M + 9, M + 10
            a(f"v_sub_f32 {vr(m)}, 0, {vr(m)}")
            a(f"v_and_b32 {vr(hi)}, 0xffff0000, {vr(m)}")
            a(f"v_sub_f32 {vr(m)}, {vr(m)}, {vr(hi)}")
            a(f"v_and_b32 {vr(mid)}, 0xffff0000, {vr(m)}")
            a(f"v_sub_f32 {vr(m)}, {vr(m)}, {vr(mid)}")
            a(f"v_lshrrev_b32 {vr(lo)}, 16, {vr(m)}")
            a(f"v_lshrrev_b32 {vr(hi)}, 16, {vr(hi)}")
            a(f"v_or_b32 {vr(hi)}, {vr(hi)}, {vr(mid)}")
            a(f"v_cndmask_b32_e64 {vr(vQ+6*q+4)}, {vr(vQ+6*q+4)}, {vr(hi)}, {sr(sHI,2)}")
            a(f"v_cndmask_b32_e64 {vr(vQ+6*q+5)}, {vr(vQ+6*q+5)}, {vr(lo)}, {sr(sHI,2)}")
        for r in range(32):
            a(f"v_mov_b32 {vr(vO+32+r)}, 0")
        for r in range(24):
            a(f"v_mov_b32 {vr(vF+r)}, 0")
        a.label("L_slow_pv")
        ld, adv = self.kv_loads(0, 4096)
        self.flush(ld + adv)
        a.wait_all()
        for q in (2, 3):
            for s in self.qk(q):
                a(s)
        a("s_nop 15")
        for r in range(32, 64):
            a(f"v_exp_f32 {vr(vS+r)}, {vr(vS+r)}")
        a("s_nop 1")
        for q in (2, 3):
            for f in range(2):
                a(self.pv(q, f))
        a(f"s_cmp_lg_u32 {sr(sKVT)}, 0")
        a("s_cbranch_scc1 L_slow_pv")
        a("s_nop 15")
        a("s_branch L_fin")
        a.label("L_code_end")

    def build(self):
        a = self.a
        self.seg("pro"); self.prologue(); self.endseg()
        snap = a.snapshot()
        ends = []
        for role in (0, 1, 2, 3):
            a.restore(snap)
            self.seg(f"q{role}"); self.qpass(role); self.endseg()
            ends.append([list(a.vm.q), list(a.lg.q)])
        assert ends[0] == ends[1] == ends[2] == ends[3], ends
        self.seg("main")
        self.ffn1()
        self.attention()
        self.attn_epilogue()
        self.phase2()
        self.endseg()
        self.seg("slow"); self.slow(); self.endseg()
        bad = []
        for role in range(4):
            bad += check_path(self.segs["pro"] + self.segs[f"q{role}"] + self.segs["main"], f"role{role}")
        m = self.segs["main"]
        i0, i1 = m.index("L_fin:"), m.index("s_cbranch_scc1 L_slow")
        bad += check_path(m[:i1 + 1] + self.segs["slow"] + m[i0:], "slow")
        for b in sorted(set(x.split(": ", 1)[1] for x in bad))[:12]:
            print("HAZARD", b, file=sys.stderr)
        head = open(os.path.join(os.path.dirname(os.path.abspath(__file__)), "..", "cdna_kernels", NAME + ".s.ref")).read()
        head = head[:head.index("; Override launch geometry")]
        txt = head + f"; @launch grid=(256,1,1) block=(256,1,1) lds={LDS_BYTES}\n"
        txt += f""".amdgcn_target "amdgcn-amd-amdhsa--gfx950"
.text
.globl {NAME}_kernel
.p2align 8
.type {NAME}_kernel,@function
{NAME}_kernel:
""" + a.text() + f""".section .rodata,"a"
.p2align 6
.amdhsa_kernel {NAME}_kernel
  .amdhsa_next_free_vgpr 512
  .amdhsa_next_free_sgpr 102
  .amdhsa_accum_offset 256
  .amdhsa_group_segment_fixed_size 0
  .amdhsa_kernarg_size 96
  .amdhsa_user_sgpr_count 2
  .amdhsa_user_sgpr_kernarg_segment_ptr 1
  .amdhsa_system_sgpr_workgroup_id_x 1
.end_amdhsa_kernel
"""
        return txt, bad


if __name__ == "__main__":
    import ast
    out = sys.argv[1]
    opt = {}
    for kv in sys.argv[2:]:
        k, v = kv.split("=", 1)
        try:
            v = ast.literal_eval(v)
        except Exception:
            pass
        opt[k] = v
    txt, bad = Gen(**opt).build()
    open(out, "w").write(txt)
    print("wrote", out, len(txt), "bytes;", len(bad), "hazards")
```
